```python
import torch

def _softmax(x, axis=-1):
    return torch.softmax(x, dim=axis)
def _gelu(x):
    return torch.nn.functional.gelu(x, approximate="tanh")
def _silu(x):
    return torch.nn.functional.silu(x)
def _sigmoid(x):
    return torch.sigmoid(x)
def _layernorm(x, axis=-1, eps=1e-5):
    m = x.mean(dim=axis, keepdim=True)
    v = x.var(dim=axis, keepdim=True, unbiased=False)
    return (x - m) / torch.sqrt(v + eps)
def _scatter_add(tgt, idx, src, axis=0):
    return tgt.clone().index_add_(axis, idx, src)
def _segment_sum(src, seg, n):
    out = torch.zeros((n,) + src.shape[1:], dtype=src.dtype)
    return out.index_add_(0, seg, src)
def _pad(x, pw):
    flat = tuple(v for pair in reversed(pw) for v in pair)
    return torch.nn.functional.pad(x, flat)

kernel_name = 'concat_heads__mha_block_cached__gqa_block_cached__decode'

def setup_inputs():

    _w = (lambda a: (lambda t: t.to(torch.bfloat16) if t.is_floating_point() else t)(torch.as_tensor(a)))
    def _A_setup():
        B, Sq, D = 1, 1, 640
        H, Sk, Dh = 32, 4096, 192
        return {
            "x": _w((lambda *s: torch.randn(*s, dtype=torch.bfloat16) * 0.8)(B, Sq, D)),
            "k_cache": _w((lambda *s: torch.randn(*s, dtype=torch.bfloat16) * 0.8)(B, H, Sk, Dh)),
            "v_cache": _w((lambda *s: torch.randn(*s, dtype=torch.bfloat16) * 0.05)(B, H, Sk, Dh)),
            "wq": _w((lambda *s: torch.randn(*s, dtype=torch.bfloat16) * 0.8)(D, H * Dh) * (D ** -0.5)),
            "wo": _w((lambda *s: torch.randn(*s, dtype=torch.bfloat16) * 0.05)(H * Dh, D) * ((H * Dh) ** -0.5)),
        }
    _A_in = _A_setup()

    def _B_setup():
        B, Sq, D = 1, 1, 640
        Hq, Hkv, Sk, Dh = 32, 32, 4096, 192
        assert Hq % Hkv == 0, (Hq, Hkv)
        return {
            "x": _w((lambda *s: torch.randn(*s, dtype=torch.bfloat16) * 0.8)(B, Sq, D)),
            "k_cache": _w((lambda *s: torch.randn(*s, dtype=torch.bfloat16) * 0.8)(B, Hkv, Sk, Dh)),
            "v_cache": _w((lambda *s: torch.randn(*s, dtype=torch.bfloat16) * 0.05)(B, Hkv, Sk, Dh)),
            "wq": _w((lambda *s: torch.randn(*s, dtype=torch.bfloat16) * 0.8)(D, Hq * Dh) * (D ** -0.5)),
            "wo": _w((lambda *s: torch.randn(*s, dtype=torch.bfloat16) * 0.05)(Hq * Dh, D) * ((Hq * Dh) ** -0.5)),
        }
    _B_in = _B_setup()

    return {
        "A_x": _A_in["x"],
        "A_k_cache": _A_in["k_cache"],
        "A_v_cache": _A_in["v_cache"],
        "A_wq": _A_in["wq"],
        "A_wo": _A_in["wo"],
        "B_x": _B_in["x"],
        "B_k_cache": _B_in["k_cache"],
        "B_v_cache": _B_in["v_cache"],
        "B_wq": _B_in["wq"],
        "B_wo": _B_in["wo"],
    }

def reference(A_x, A_k_cache, A_v_cache, A_wq, A_wo, B_x, B_k_cache, B_v_cache, B_wq, B_wo):
    def _A_ref(x, k_cache, v_cache, wq, wo):
        B, Sq, D = x.shape
        H, Dh = 32, 192
        q = (lambda x, *d: x.permute(*d))((x @ wq).reshape(B, Sq, H, Dh), 0, 2, 1, 3)
        scores = torch.einsum("bhqd,bhkd->bhqk", q, k_cache) * (Dh ** -0.5)
        p = _softmax(scores, axis=-1)
        o = torch.einsum("bhqk,bhkd->bhqd", p, v_cache)
        return (lambda x, *d: x.permute(*d))(o, 0, 2, 1, 3).reshape(B, Sq, H * Dh) @ wo

    def _B_ref(x, k_cache, v_cache, wq, wo):
        B, Sq, D = x.shape
        Hq, Dh = 32, 192
        Hkv = k_cache.shape[1]
        rep = Hq // Hkv
        q = (lambda x, *d: x.permute(*d))((x @ wq).reshape(B, Sq, Hq, Dh), 0, 2, 1, 3)
        k = (lambda x, n, axis: torch.repeat_interleave(x, n, dim=axis))(k_cache, rep, axis=1)
        v = (lambda x, n, axis: torch.repeat_interleave(x, n, dim=axis))(v_cache, rep, axis=1)
        scores = torch.einsum("bhqd,bhkd->bhqk", q, k) * (Dh ** -0.5)
        p = _softmax(scores, axis=-1)
        o = torch.einsum("bhqk,bhkd->bhqd", p, v)
        return (lambda x, *d: x.permute(*d))(o, 0, 2, 1, 3).reshape(B, Sq, Hq * Dh) @ wo

    a = _A_ref(A_x, A_k_cache, A_v_cache, A_wq, A_wo)
    b = _B_ref(B_x, B_k_cache, B_v_cache, B_wq, B_wo)
    return torch.concatenate([a, b], axis=-1)
```

```python
import sys, argparse, math

NAME = "concat_heads__mha_block_cached__gqa_block_cached__decode"

HEADER = """; Kernarg layout for this problem (104 bytes, ptrs only, base s[0:1]):
"""

class Asm:
    def __init__(self):
        self.lines = []
        self.vm = []
    def __call__(self, s=""):
        for l in s.split("\n"):
            self.lines.append("    " + l.strip() if l.strip() and not l.strip().endswith(":") else l.strip())
    def c(self, s):
        self.lines.append("    ; " + s)
    def vmem(self, s, tag):
        self(s)
        self.vm.append(tag)
    def wait_vm(self, tag):
        idx = max(i for i, t in enumerate(self.vm) if t == tag)
        n = len(self.vm) - 1 - idx
        assert n <= 63
        self(f"s_waitcnt vmcnt({n})")
    def text(self):
        return "\n".join(self.lines) + "\n"

PSTR = 1552
L_PART = 0
L_QBUF = 16 * PSTR
L_ML = L_QBUF + 384
L_FIN = L_ML + 128
L_Y = L_FIN + 2048
YSTR = 3072
L_TOTAL = L_Y + 16 * YSTR

W_Y = 0
W_ML = 256 * 2560
W_SIZE = W_ML + 256 * 8

sK, sV, sWQ, sWO, sX, sWS, sOUT, sDBG = 32, 36, 40, 44, 48, 52, 56, 60
s_w, s_br, s_hd, s_sp, s_row, s_t0, s_t1, s_t2, s_off, s_c, s_m, s_l = range(64, 76)
s_u0, s_u1, s_u2 = 76, 77, 78
s_ex = 80
s_cons = 82
s_cnt = 83
s_st = 84

vK, vQ, vX, vO, vPW, vPR, vYW, vT0, vT1, vT2, vT3 = 1, 2, 3, 4, 5, 6, 7, 8, 9, 10, 11
vXV = 24
vMLo = 12
vT4, vT5 = 14, 15
vMask = 16
vB = 20
vS = 24
vBo = 20
vAcc = 40
vYacc = 32
vQp = 52
SLOT = [64, 76, 88, 100, 112, 52]

def r(b, n):
    return f"v[{b}:{b+n-1}]"
def sr(b, n):
    return f"s[{b}:{b+n-1}]"

def make_srd(a, d, base_lo, base_hi, size):
    a(f"s_mov_b32 s{d}, s{base_lo}")
    a(f"s_and_b32 s{d+1}, s{base_hi}, 0xffff")
    a(f"s_mov_b32 s{d+2}, {size}")
    a(f"s_mov_b32 s{d+3}, 0x20000")

def row16(a, op, regs):
    for ror in (8, 4, 2, 1):
        for x in regs:
            a(f"{op}_dpp v{x}, v{x}, v{x} row_ror:{ror} row_mask:0xf bank_mask:0xf")
        if len(regs) < 3:
            a(f"s_nop {2 - len(regs)}")

def stamp(a, o, idx):
    if not o.stamps:
        return
    a(f"s_memrealtime {sr(86 + 2 * (idx % 2), 2)}")
    a("s_waitcnt lgkmcnt(0)")
    a(f"v_writelane_b32 v125, s{86 + 2 * (idx % 2)}, {idx}")

def consumer(a, o, poll):
    a.c("---- final reduction over the 128 partial rows of one branch, 32 columns")
    a(f"s_cmp_ge_u32 s{s_cons}, 20")
    a(f"s_cselect_b32 s{s_t0}, 1, 0")
    a(f"s_mul_i32 s{s_t1}, s{s_t0}, 20")
    a(f"s_sub_u32 s{s_t1}, s{s_cons}, s{s_t1}")
    a(f"s_mul_i32 s{s_t2}, s{s_t0}, {128 * 2560}")
    a(f"s_lshl_b32 s{s_off}, s{s_t1}, 7")
    a(f"s_add_u32 s{s_t2}, s{s_t2}, s{s_off}")
    a(f"s_lshl_b32 s{s_off}, s{s_t0}, 10")
    a(f"s_add_u32 s{s_off}, s{s_off}, {W_ML}")
    a(f"v_lshrrev_b32 v{vT0}, 3, v0")
    a(f"v_and_b32 v{vT1}, 7, v0")
    a(f"v_lshlrev_b32 v{vT1}, 4, v{vT1}")
    a(f"v_mul_u32_u24 v{vT2}, 2560, v{vT0}")
    a(f"v_add_u32 v{vT2}, v{vT2}, v{vT1}")
    a(f"v_lshlrev_b32 v{vT3}, 3, v{vT0}")
    fl = " sc1" if poll else ""
    if poll:
        a(f"s_mov_b32 s{s_cnt}, 0")
        a("L_poll:")
    a(f"buffer_load_dwordx4 v[32:35], v{vT2}, {sr(sWS,4)}, s{s_t2} offen{fl}")
    a(f"buffer_load_dwordx2 v[36:37], v{vT3}, {sr(sWS,4)}, s{s_off} offen{fl}")
    if poll:
        a(f"s_add_u32 s{s_cnt}, s{s_cnt}, 1")
        a("s_waitcnt vmcnt(0)")
        a("v_max3_u32 v38, v32, v33, v34")
        a("v_max3_u32 v39, v35, v36, v37")
        a("v_max_u32 v38, v38, v39")
        a("v_cmp_eq_u32 vcc, -1, v38")
        a(f"s_cmp_lt_u32 s{s_cnt}, 0x40000")
        a("s_cbranch_scc0 L_poll_done")
        a("s_cbranch_vccnz L_poll")
        a("L_poll_done:")
    else:
        a("s_waitcnt vmcnt(0)")
    stamp(a, o, 9)
    a.c("softmax weight of this row among the 4 splits of its head (lane groups xor 8, xor 16)")
    a("v_mov_b32 v38, v36")
    a("s_nop 1")
    a("v_max_f32_dpp v38, v38, v38 row_ror:8 row_mask:0xf bank_mask:0xf")
    a("s_nop 0")
    a("v_mov_b32 v39, v38")
    a("s_nop 1")
    a("v_permlane16_swap_b32 v38, v39")
    a("v_max_f32 v38, v38, v39")
    a("v_sub_f32 v36, v36, v38")
    a("v_exp_f32 v36, v36")
    a("s_nop 0")
    a("v_mul_f32 v37, v37, v36")
    a("s_nop 1")
    a("v_add_f32_dpp v37, v37, v37 row_ror:8 row_mask:0xf bank_mask:0xf")
    a("s_nop 0")
    a("v_mov_b32 v39, v37")
    a("s_nop 1")
    a("v_permlane16_swap_b32 v37, v39")
    a("v_add_f32 v37, v37, v39")
    a("v_rcp_f32 v37, v37")
    a("s_nop 0")
    a("v_mul_f32 v36, v36, v37")
    for i in range(4):
        a(f"v_mul_f32 v{32+i}, v{32+i}, v36")
    a.c("sum over the 8 rows of the wave")
    for i in range(4):
        a(f"v_add_f32_dpp v{32+i}, v{32+i}, v{32+i} row_ror:8 row_mask:0xf bank_mask:0xf")
    a("s_nop 1")
    a("v_permlane16_swap_b32 v32, v33")
    a("v_permlane16_swap_b32 v34, v35")
    a("v_add_f32 v32, v32, v33")
    a("v_add_f32 v34, v34, v35")
    a("s_nop 1")
    a("v_permlane32_swap_b32 v32, v34")
    a("v_add_f32 v32, v32, v34")
    a.c("LDS slot of this wave: 32 floats, position 4*(lane&7) + (lane>>4)")
    a(f"v_and_b32 v{vT0}, 63, v0")
    a(f"v_lshrrev_b32 v{vT0}, 4, v{vT0}")
    a(f"v_lshlrev_b32 v{vT0}, 2, v{vT0}")
    a(f"v_add_u32 v{vT0}, v{vT0}, v{vT1}")
    a(f"v_lshrrev_b32 v{vT2}, 6, v0")
    a(f"v_lshl_add_u32 v{vT0}, v{vT2}, 7, v{vT0}")
    a(f"ds_write_b32 v{vT0}, v32 offset:{L_FIN}")
    a("s_waitcnt lgkmcnt(0)")
    a("s_barrier")
    a(f"s_cmp_lg_u32 s{s_w}, 0")
    a("s_cbranch_scc1 L_end")
    a.c("wave 0: lane = pos(0..31) + 32*half; each lane sums 8 wave slots")
    a(f"v_and_b32 v{vT0}, 31, v0")
    a(f"v_lshrrev_b32 v{vT2}, 5, v0")
    a(f"v_lshlrev_b32 v{vT3}, 2, v{vT0}")
    a(f"v_lshl_add_u32 v{vT3}, v{vT2}, 10, v{vT3}")
    for i in range(8):
        a(f"ds_read_b32 v{32+i}, v{vT3} offset:{L_FIN + 128 * i}")
    a.c("column of position p: 8*(p&3) + (p>>2)")
    a(f"v_and_b32 v{vT2}, 3, v{vT0}")
    a(f"v_lshrrev_b32 v{vT0}, 2, v{vT0}")
    a(f"v_lshl_add_u32 v{vT0}, v{vT2}, 3, v{vT0}")
    a(f"v_lshlrev_b32 v{vT0}, 1, v{vT0}")
    a(f"s_mul_i32 s{s_t0}, s{s_t0}, 1280")
    a(f"s_lshl_b32 s{s_t1}, s{s_t1}, 6")
    a(f"s_add_u32 s{s_t0}, s{s_t0}, s{s_t1}")
    a("s_waitcnt lgkmcnt(0)")
    a("v_add_f32 v32, v32, v33")
    a("v_add_f32 v34, v34, v35")
    a("v_add_f32 v36, v36, v37")
    a("v_add_f32 v38, v38, v39")
    a("v_add_f32 v32, v32, v34")
    a("v_add_f32 v36, v36, v38")
    a("v_add_f32 v32, v32, v36")
    a("v_mov_b32 v33, v32")
    a("s_nop 1")
    a("v_permlane32_swap_b32 v32, v33")
    a("v_add_f32 v32, v32, v33")
    a("v_cvt_pk_bf16_f32 v32, v32, v32")
    a("s_mov_b64 exec, 0xffffffff")
    a(f"buffer_store_short v32, v{vT0}, {sr(sOUT,4)}, s{s_t0} offen")

def emit_stamps(a, o, wgreg):
    if not o.stamps:
        return
    a.c("diagnostic: 16 time stamps per wave to ws + 1 MiB")
    a("s_mov_b64 exec, 0xffff")
    a(f"s_lshl_b32 s{s_t0}, {wgreg}, 10")
    a(f"s_lshl_b32 s{s_t1}, s{s_w}, 6")
    a(f"s_add_u32 s{s_t0}, s{s_t0}, s{s_t1}")
    a(f"s_add_u32 s{s_t0}, s{s_t0}, 0x100000")
    a("v_mbcnt_lo_u32_b32 v124, -1, 0")
    a("v_lshlrev_b32 v124, 2, v124")
    a(f"buffer_store_dword v125, v124, {sr(sWS,4)}, s{s_t0} offen")

def main_kernel(a, o):
    single = o.mode == "single"
    kv = " nt" if o.nt else ""
    a("s_cmp_ge_u32 s2, 256")
    a("s_cbranch_scc1 L_end")
    a("s_load_dwordx16 s[4:19], s[0:1], 0")
    a("s_load_dwordx8 s[20:27], s[0:1], 64")
    a("s_load_dwordx2 s[28:29], s[0:1], 96")
    if o.stamps:
        a("v_mov_b32 v125, 0")
    a.c("work split: branch = wg>>7, head = (wg&7) | ((wg>>5)&3)<<3, key split = (wg>>3)&3")
    a(f"s_lshr_b32 s{s_br}, s2, 7")
    a(f"s_and_b32 s{s_t0}, s2, 7")
    a(f"s_bfe_u32 s{s_t1}, s2, 0x20005")
    a(f"s_lshl_b32 s{s_t1}, s{s_t1}, 3")
    a(f"s_or_b32 s{s_hd}, s{s_t0}, s{s_t1}")
    a(f"s_bfe_u32 s{s_sp}, s2, 0x20003")
    a(f"v_lshrrev_b32 v{vT0}, 6, v0")
    a(f"v_and_b32 v{vT1}, 7, v0")
    a(f"v_readfirstlane_b32 s{s_w}, v{vT0}")
    a(f"v_bfe_u32 v{vT2}, v0, 4, 2")
    a(f"v_bfe_u32 v{vT3}, v0, 3, 1")
    a(f"v_lshl_add_u32 v{vT4}, v{vT3}, 2, v{vT2}")
    a(f"v_mad_u32_u24 v{vT5}, v{vT0}, 40, v{vT4}")
    a(f"v_lshlrev_b32 v{vX}, 1, v{vT5}")
    a(f"v_mul_u32_u24 v{vQ}, 12288, v{vT5}")
    a(f"v_lshl_add_u32 v{vQ}, v{vT1}, 4, v{vQ}")
    a(f"s_mul_i32 s{s_t2}, s{s_hd}, 384")
    a(f"s_cmp_eq_u32 s{s_br}, 0")
    a("s_waitcnt lgkmcnt(0)")
    stamp(a, o, 0)
    if o.stamps:
        a(f"s_cmp_eq_u32 s{s_br}, 0")
    a("s_cselect_b64 s[4:5], s[4:5], s[14:15]")
    a("s_cselect_b64 s[10:11], s[10:11], s[20:21]")
    a("s_cselect_b64 s[6:7], s[6:7], s[16:17]")
    a("s_cselect_b64 s[8:9], s[8:9], s[18:19]")
    a("s_cselect_b64 s[12:13], s[12:13], s[22:23]")
    make_srd(a, sX, 4, 5, 1280)
    a(f"s_add_u32 s10, s10, s{s_t2}")
    a("s_addc_u32 s11, s11, 0")
    a(f"s_sub_u32 s{s_t2}, {640 * 12288}, s{s_t2}")
    a(f"s_mov_b32 s{sWQ}, s10")
    a(f"s_and_b32 s{sWQ+1}, s11, 0xffff")
    a(f"s_mov_b32 s{sWQ+2}, s{s_t2}")
    a(f"s_mov_b32 s{sWQ+3}, 0x20000")
    make_srd(a, sWS, 28, 29, W_SIZE if not o.stamps else 0x200000)
    a.c("partial row index of this workgroup")
    a(f"s_lshl_b32 s{s_row}, s{s_br}, 5")
    a(f"s_add_u32 s{s_row}, s{s_row}, s{s_hd}")
    a(f"s_lshl_b32 s{s_row}, s{s_row}, 2")
    a(f"s_add_u32 s{s_row}, s{s_row}, s{s_sp}")
    if single:
        a.c("wave 15 marks this workgroup's hand-off words as not yet written")
        a(f"s_cmp_lg_u32 s{s_w}, 15")
        a("s_cbranch_scc1 L_noclear")
        a(f"v_and_b32 v{vT5}, 63, v0")
        a(f"v_lshlrev_b32 v{vT5}, 4, v{vT5}")
        for i in range(4):
            a(f"v_mov_b32 v{32+i}, -1")
        a(f"s_mul_i32 s{s_t0}, s{s_row}, 2560")
        a(f"s_lshl_b32 s{s_t1}, s{s_row}, 3")
        a(f"s_add_u32 s{s_t1}, s{s_t1}, {W_ML}")
        a(f"buffer_store_dwordx4 v[32:35], v{vT5}, {sr(sWS,4)}, s{s_t0} offen sc1")
        a(f"buffer_store_dwordx4 v[32:35], v{vT5}, {sr(sWS,4)}, s{s_t0} offen offset:1024 sc1")
        a("s_mov_b64 exec, 0xffffffff")
        a(f"buffer_store_dwordx4 v[32:35], v{vT5}, {sr(sWS,4)}, s{s_t0} offen offset:2048 sc1")
        a("s_mov_b64 exec, 1")
        a(f"buffer_store_dwordx2 v[32:33], v{vT5}, {sr(sWS,4)}, s{s_t1} offen sc1")
        a("s_mov_b64 exec, -1")
        a("L_noclear:")
    for t in range(5):
        a.vmem(f"buffer_load_ushort v{vXV+t}, v{vX}, {sr(sX,4)}, 0 offen offset:{16*t}", f"X{t}")
    for t in range(5):
        if t == 0:
            so = "0"
        else:
            a(f"s_mov_b32 s{s_off}, {t * 8 * 12288}")
            so = f"s{s_off}"
        for j in range(3):
            a.vmem(f"buffer_load_dwordx4 {r(SLOT[t]+4*j,4)}, v{vQ}, {sr(sWQ,4)}, {so} offen offset:{128*j}", f"WQ{t}")
    stamp(a, o, 1)
    a.c("remaining descriptors and lane constants")
    a(f"s_mul_i32 s{s_t0}, s{s_hd}, 1572864")
    a(f"s_mul_i32 s{s_t1}, s{s_sp}, 393216")
    a(f"s_add_u32 s{s_t0}, s{s_t0}, s{s_t1}")
    a(f"s_add_u32 s6, s6, s{s_t0}")
    a("s_addc_u32 s7, s7, 0")
    a(f"s_add_u32 s8, s8, s{s_t0}")
    a("s_addc_u32 s9, s9, 0")
    make_srd(a, sK, 6, 7, 393216)
    make_srd(a, sV, 8, 9, 393216)
    a(f"s_mul_i32 s{s_t0}, s{s_hd}, 245760")
    a(f"s_add_u32 s12, s12, s{s_t0}")
    a("s_addc_u32 s13, s13, 0")
    make_srd(a, sWO, 12, 13, 245760)
    make_srd(a, sOUT, 24, 25, 2560)
    make_srd(a, sDBG, 26, 27, 256)
    wstr, gstr = (24576, 3072) if o.contig else (3072, 49152)
    a(f"v_mul_u32_u24 v{vK}, 384, v{vT4}")
    a(f"v_lshl_add_u32 v{vK}, v{vT1}, 4, v{vK}")
    a(f"s_mul_i32 s{s_t0}, s{s_w}, {wstr}")
    a(f"v_add_u32 v{vK}, s{s_t0}, v{vK}")
    a.c("selection masks: element (lane&7) of the 8 packed bf16")
    a(f"v_and_b32 v{vT5}, 1, v0")
    a(f"v_lshlrev_b32 v{vT5}, 4, v{vT5}")
    a(f"v_mov_b32 v{vT0}, 0xffff")
    a(f"v_lshlrev_b32 v{vT5}, v{vT5}, v{vT0}")
    a(f"v_lshrrev_b32 v{vT0}, 1, v{vT1}")
    for i in range(4):
        a(f"v_cmp_eq_u32 vcc, {i}, v{vT0}")
        a("s_nop 1")
        a(f"v_cndmask_b32 v{vMask+i}, 0, v{vT5}, vcc")
    a(f"v_add_u32 v{vMLo}, -1, v{vT3}")
    a.c("LDS partial write address: w*PSTR + b*768 + (G&1)*128 + c*16")
    a(f"s_mul_i32 s{s_t0}, s{s_w}, {PSTR}")
    a(f"v_mul_u32_u24 v{vPW}, 768, v{vT3}")
    a(f"v_and_b32 v{vT0}, 1, v{vT2}")
    a(f"v_lshl_add_u32 v{vPW}, v{vT0}, 7, v{vPW}")
    a(f"v_lshl_add_u32 v{vPW}, v{vT1}, 4, v{vPW}")
    a(f"v_add_u32 v{vPW}, s{s_t0}, v{vPW}")
    a.c("LDS partial read address: n*PSTR + (G>>1)*768 + (12 w + 2 (G&1))*4")
    a(f"v_and_b32 v{vT5}, 15, v0")
    a(f"v_mul_u32_u24 v{vPR}, {PSTR}, v{vT5}")
    a(f"v_lshl_add_u32 v{vPR}, v{vT0}, 3, v{vPR}")
    a(f"v_lshrrev_b32 v{vT4}, 1, v{vT2}")
    a(f"v_mul_u32_u24 v{vX}, 768, v{vT4}")
    a(f"s_mul_i32 s{s_t0}, s{s_w}, 48")
    a(f"v_add3_u32 v{vPR}, v{vPR}, v{vX}, s{s_t0}")
    a.c("rho(G) = 2 (G&1) + (G>>1); wo lane offset = 8 rho * 1280 + n * 16")
    a(f"v_lshl_add_u32 v{vT4}, v{vT0}, 1, v{vT4}")
    a(f"v_mul_u32_u24 v{vO}, 10240, v{vT4}")
    a(f"v_lshl_add_u32 v{vO}, v{vT5}, 4, v{vO}")
    a(f"v_lshlrev_b32 v{vX}, 4, v{vT4}")
    a.c("row base of step t: u = 3 w + t, d0 = 32 (u>>3) + (u&7)")
    for t, su in enumerate((s_u0, s_u1, s_u2)):
        a(f"s_mul_i32 s{s_t0}, s{s_w}, 3")
        a(f"s_add_u32 s{s_t0}, s{s_t0}, {t}")
        a(f"s_lshr_b32 s{s_t1}, s{s_t0}, 3")
        a(f"s_lshl_b32 s{s_t1}, s{s_t1}, 5")
        a(f"s_and_b32 s{s_t0}, s{s_t0}, 7")
        a(f"s_add_u32 s{su}, s{s_t0}, s{s_t1}")
    a.c("LDS y write address: w*YSTR + b*512 + G*128 + c*16")
    a(f"s_mul_i32 s{s_t0}, s{s_w}, {YSTR}")
    a(f"v_lshlrev_b32 v{vYW}, 9, v{vT3}")
    a(f"v_lshl_add_u32 v{vYW}, v{vT2}, 7, v{vYW}")
    a(f"v_lshl_add_u32 v{vYW}, v{vT1}, 4, v{vYW}")
    a(f"v_add_u32 v{vYW}, s{s_t0}, v{vYW}")
    a(f"s_mov_b32 s{s_c}, {hex(f32bits(math.log2(math.e) / math.sqrt(192.0)))}")
    a(f"s_mov_b32 s{s_ex}, 0x00ff00ff")
    a(f"s_mov_b32 s{s_ex+1}, 0xff00ff00")

    def kvload(kind, t, slot):
        srd = sK if kind == "K" else sV
        if t == 0:
            so = "0"
        else:
            a(f"s_mov_b32 s{s_off}, {t * gstr}")
            so = f"s{s_off}"
        for j in range(3):
            a.vmem(f"buffer_load_dwordx4 {r(SLOT[slot]+4*j,4)}, v{vK}, {sr(srd,4)}, {so} offen offset:{128*j}{kv}", f"{kind}{t}")

    def woload(cb, slot):
        for t, su in enumerate((s_u0, s_u1, s_u2)):
            a.vmem(f"buffer_load_dwordx4 {r(SLOT[slot]+4*t,4)}, v{vO}, {sr(sWO,4)}, s{su} offen offset:{256*cb}", f"WO{cb}")

    def mfma3(slot, first):
        for j in range(3):
            c = "0" if first else r(vAcc + 4 * j, 4)
            a(f"v_mfma_f32_16x16x32_bf16 {r(vAcc+4*j,4)}, {r(SLOT[slot]+4*j,4)}, {r(vB,4)}, {c}")

    def write_partials():
        a(f"s_mov_b64 exec, {sr(s_ex,2)}")
        for j in range(3):
            a(f"ds_write_b128 v{vPW}, {r(vAcc+4*j,4)} offset:{L_PART + 256*j}")
        a("s_mov_b64 exec, -1")

    def read_partials():
        for t in range(3):
            a(f"ds_read_b64 v[{32+2*t}:{33+2*t}], v{vPR} offset:{L_PART + 16*t}")

    def fold_halves():
        for t in range(3):
            a(f"v_permlane32_swap_b32 v{32+2*t}, v{33+2*t}")
        for t in range(3):
            a(f"v_add_f32 v{32+2*t}, v{32+2*t}, v{33+2*t}")

    a.c("======== q = x @ wq for this head")
    for t in range(5):
        a.wait_vm(f"WQ{t}")
        if t == 0:
            stamp(a, o, 2)
        a(f"v_lshl_or_b32 v{vT0}, v{vXV+t}, 16, v{vXV+t}")
        for i in range(4):
            a(f"v_and_b32 v{vB+i}, v{vMask+i}, v{vT0}")
        a("s_nop 1")
        mfma3(t, t == 0)
        kvload("K", t, t)
    if single:
        a.c("wave 15: its marker stores are older than the loads waited for above; count this workgroup as cleared")
        a(f"s_cmp_lg_u32 s{s_w}, 15")
        a("s_cbranch_scc1 L_nosig")
        a("s_mov_b64 exec, 1")
        a(f"v_mov_b32 v{vT0}, 0")
        a(f"v_mov_b32 v{vT1}, 1")
        a(f"buffer_atomic_add v{vT1}, v{vT0}, {sr(sDBG,4)}, 0 offen sc1")
        a("s_mov_b64 exec, -1")
        a("L_nosig:")
    a("s_nop 4")
    write_partials()
    for i in range(8):
        a(f"v_mov_b32 v{vS+i}, 0")
    a("s_waitcnt lgkmcnt(0)")
    a("s_barrier")
    read_partials()
    for t, su in enumerate((s_u0, s_u1, s_u2)):
        a(f"s_lshl_b32 s{s_t0}, s{su}, 1")
        a(f"v_add_u32 v{vT0+t}, s{s_t0}, v{vX}")
    a("s_waitcnt lgkmcnt(0)")
    fold_halves()
    row16(a, "v_add_f32", [32, 34, 36])
    for t in range(3):
        a(f"v_cvt_pk_bf16_f32 v{32+2*t}, v{32+2*t}, v{32+2*t}")
    for t in range(3):
        a(f"ds_write_b16 v{vT0+t}, v{32+2*t} offset:{L_QBUF}")
    a(f"v_and_b32 v{vT3}, 7, v0")
    a(f"v_lshlrev_b32 v{vT3}, 4, v{vT3}")
    for su in (s_u0, s_u1, s_u2):
        a(f"s_mul_i32 s{su}, s{su}, 1280")
    a("s_waitcnt lgkmcnt(0)")
    a("s_barrier")
    for j in range(3):
        a(f"ds_read_b128 {r(vQp+4*j,4)}, v{vT3} offset:{L_QBUF + 128*j}")
    a("s_waitcnt lgkmcnt(0)")
    stamp(a, o, 3)

    a.c("======== scores")
    vslot = {}
    for t in range(8):
        slot = t % 5
        a.wait_vm(f"K{t}")
        for j in range(12):
            a(f"v_dot2c_f32_bf16 v{vS+t}, v{SLOT[slot]+j}, v{vQp+j}")
        if t < 3:
            kvload("K", t + 5, slot)
        else:
            kvload("V", t - 3, slot)
            vslot[t - 3] = slot
    kvload("V", 5, 5)
    vslot[5] = 5
    stamp(a, o, 4)
    a.c("======== softmax numerators over this wave's 64 keys")
    regs = [vS + i for i in range(8)]
    for ctl in ("quad_perm:[1,0,3,2]", "quad_perm:[2,3,0,1]", "row_half_mirror"):
        for x in regs:
            a(f"v_add_f32_dpp v{x}, v{x}, v{x} {ctl} row_mask:0xf bank_mask:0xf")
    a(f"v_max3_f32 v{vT0}, v{vS}, v{vS+1}, v{vS+2}")
    a(f"v_max3_f32 v{vT1}, v{vS+3}, v{vS+4}, v{vS+5}")
    a(f"v_max3_f32 v{vT0}, v{vT0}, v{vS+6}, v{vS+7}")
    a(f"v_max_f32 v{vT0}, v{vT0}, v{vT1}")
    for ctl in ("row_ror:8 row_mask:0xf", "row_bcast:15 row_mask:0xa", "row_bcast:31 row_mask:0xc"):
        a("s_nop 1")
        a(f"v_max_f32_dpp v{vT0}, v{vT0}, v{vT0} {ctl} bank_mask:0xf")
    a(f"v_mul_f32 v{vT0}, s{s_c}, v{vT0}")
    a("s_nop 0")
    a(f"v_readlane_b32 s{s_m}, v{vT0}, 63")
    a(f"v_mov_b32 v{vT1}, s{s_c}")
    a("s_nop 0")
    for x in regs:
        a(f"v_fma_f32 v{x}, v{x}, v{vT1}, -s{s_m}")
    for x in regs:
        a(f"v_exp_f32 v{x}, v{x}")
    a("s_nop 0")
    a(f"v_add_f32 v{vT0}, v{vS}, v{vS+1}")
    a(f"v_add_f32 v{vT1}, v{vS+2}, v{vS+3}")
    a(f"v_add_f32 v{vT2}, v{vS+4}, v{vS+5}")
    a(f"v_add_f32 v{vT3}, v{vS+6}, v{vS+7}")
    a(f"v_add_f32 v{vT0}, v{vT0}, v{vT1}")
    a(f"v_add_f32 v{vT2}, v{vT2}, v{vT3}")
    a(f"v_add_f32 v{vT0}, v{vT0}, v{vT2}")
    for x in regs:
        a(f"v_cvt_pk_bf16_f32 v{x}, v{x}, v{x}")
    for ctl in ("row_ror:8 row_mask:0xf", "row_bcast:15 row_mask:0xa", "row_bcast:31 row_mask:0xc"):
        a(f"v_add_f32_dpp v{vT0}, v{vT0}, v{vT0} {ctl} bank_mask:0xf")
        a("s_nop 1")
    a(f"v_readlane_b32 s{s_l}, v{vT0}, 63")
    a(f"v_mov_b32 v{vT2}, s{s_m}")
    a(f"s_lshl_b32 s{s_t0}, s{s_w}, 3")
    a(f"v_mov_b32 v{vT3}, s{s_l}")
    a(f"v_mov_b32 v{vT1}, s{s_t0}")
    a(f"ds_write_b64 v{vT1}, v[{vT2}:{vT3}] offset:{L_ML}")

    a.c("======== o = p @ V")
    woslot = {}
    if single:
        a(f"s_mov_b32 s{s_cons}, s2")
    for t in range(8):
        slot = vslot[t]
        for i in range(4):
            a(f"v_and_b32 v{vB+i}, v{vMask+i}, v{vS+t}")
        a.wait_vm(f"V{t}")
        a("s_nop 0")
        mfma3(slot, t == 0)
        if single and t == 2:
            a.c("reducer workgroups: wave 0 fetches the cleared-count")
            a(f"s_cmp_ge_u32 s{s_cons}, 40")
            a("s_cbranch_scc1 L_nochk0")
            a(f"s_cmp_lg_u32 s{s_w}, 0")
            a("s_cbranch_scc1 L_nochk0")
            a(f"v_mov_b32 v{vT4}, 0")
            a(f"buffer_load_dword v{vT5}, v{vT4}, {sr(sDBG,4)}, 0 offen sc1")
            a("L_nochk0:")
        if t < 2:
            kvload("V", t + 6, slot)
            vslot[t + 6] = slot
        elif t < 7:
            woload(t - 2, slot)
            woslot[t - 2] = slot
    stamp(a, o, 5)
    a(f"v_and_b32 v{vT0}, 15, v0")
    a(f"v_lshlrev_b32 v{vT0}, 3, v{vT0}")
    a("s_nop 4")
    write_partials()
    if single:
        a.c("reducer workgroups must not look at hand-off words before every workgroup has cleared its own")
        a(f"s_cmp_ge_u32 s{s_cons}, 40")
        a("s_cbranch_scc1 L_nochk1")
        a(f"s_cmp_lg_u32 s{s_w}, 0")
        a("s_cbranch_scc1 L_nochk1")
        a.wait_vm("WO0")
        a(f"s_mov_b32 s{s_cnt}, 0")
        a("L_chk:")
        a(f"v_readfirstlane_b32 s{s_t0}, v{vT5}")
        a(f"s_add_u32 s{s_cnt}, s{s_cnt}, 1")
        a(f"s_cmp_ge_u32 s{s_t0}, 256")
        a("s_cbranch_scc1 L_nochk1")
        a(f"s_cmp_ge_u32 s{s_cnt}, 0x40000")
        a("s_cbranch_scc1 L_nochk1")
        a(f"buffer_load_dword v{vT5}, v{vT4}, {sr(sDBG,4)}, 0 offen sc1")
        a("s_waitcnt vmcnt(0)")
        a("s_branch L_chk")
        a("L_nochk1:")
    a("s_waitcnt lgkmcnt(0)")
    a("s_barrier")
    stamp(a, o, 6)
    a(f"ds_read_b64 v[38:39], v{vT0} offset:{L_ML}")
    read_partials()
    a("s_waitcnt lgkmcnt(3)")
    a(f"v_mov_b32 v{vT2}, v38")
    a("s_nop 1")
    row16(a, "v_max_f32", [vT2])
    a(f"v_sub_f32 v38, v38, v{vT2}")
    a("v_exp_f32 v38, v38")
    a("s_waitcnt lgkmcnt(0)")
    fold_halves()
    a(f"v_mul_f32 v{vT3}, v39, v38")
    for t in range(3):
        a(f"v_mul_f32 v{32+2*t}, v{32+2*t}, v38")
    row16(a, "v_add_f32", [vT3, 32, 34, 36])
    for t in range(3):
        a(f"v_cvt_pk_bf16_f32 v{32+2*t}, v{32+2*t}, v{32+2*t}")
    for t in range(3):
        a(f"v_and_b32 v{32+2*t}, v{vMLo}, v{32+2*t}")
    for t in range(3):
        for i in range(4):
            a(f"v_and_b32 v{vBo+4*t+i}, v{vMask+i}, v{32+2*t}")
    fl = " sc1" if single else ""
    a.c("wave 0 publishes (max, sum) of this key split")
    a(f"s_cmp_lg_u32 s{s_w}, 0")
    a("s_cbranch_scc1 L_noml")
    a("s_mov_b64 exec, 1")
    a(f"s_lshl_b32 s{s_t1}, s{s_row}, 3")
    a(f"s_add_u32 s{s_t1}, s{s_t1}, {W_ML}")
    a(f"v_mov_b32 v{vT0}, 0")
    if single:
        a(f"v_min_u32 v{vT2}, -2, v{vT2}")
        a(f"v_min_u32 v{vT3}, -2, v{vT3}")
    a(f"buffer_store_dwordx2 v[{vT2}:{vT3}], v{vT0}, {sr(sWS,4)}, s{s_t1} offen{fl}")
    a("s_mov_b64 exec, -1")
    a("L_noml:")
    a.c("======== y = o @ wo (this wave's 12 rows)")
    for cb in range(5):
        a.wait_vm(f"WO{cb}")
        for t in range(3):
            c = "0" if t == 0 else r(vYacc + 4 * cb, 4)
            a(f"v_mfma_f32_16x16x32_bf16 {r(vYacc+4*cb,4)}, {r(SLOT[woslot[cb]]+4*t,4)}, {r(vBo+4*t,4)}, {c}")
    stamp(a, o, 7)
    a("s_nop 4")
    for p in range(2):
        for i in range(4):
            a(f"v_mov_b32_dpp v{vYacc+8*p+i}, v{vYacc+8*p+4+i} row_ror:8 row_mask:0xf bank_mask:0xc")
    a(f"ds_write_b128 v{vYW}, {r(vYacc,4)} offset:{L_Y}")
    a(f"ds_write_b128 v{vYW}, {r(vYacc+8,4)} offset:{L_Y + 1024}")
    a(f"ds_write_b128 v{vYW}, {r(vYacc+16,4)} offset:{L_Y + 2048}")
    a(f"v_lshlrev_b32 v{vT0}, 3, v0")
    a(f"s_mul_i32 s{s_t0}, s{s_row}, 2560")
    a("s_waitcnt lgkmcnt(0)")
    a("s_barrier")
    a(f"s_cmp_ge_u32 s{s_w}, 5")
    a("s_cbranch_scc1 L_ydone")
    a(f"v_add_u32 v{vT1}, {L_Y}, v{vT0}")
    for i in range(16):
        a(f"ds_read_b64 v[{64+2*i}:{65+2*i}], v{vT1} offset:{YSTR*i}")
    for i in range(8):
        a(f"s_waitcnt lgkmcnt({14-2*i})")
        a(f"v_pk_add_f32 v[{64+4*i}:{65+4*i}], v[{64+4*i}:{65+4*i}], v[{66+4*i}:{67+4*i}]")
    for st in (4, 8, 16):
        for i in range(0, 32, 2 * st):
            a(f"v_pk_add_f32 v[{64+i}:{65+i}], v[{64+i}:{65+i}], v[{64+i+st}:{65+i+st}]")
    if single:
        a("v_min_u32 v64, -2, v64")
        a("v_min_u32 v65, -2, v65")
    a(f"buffer_store_dwordx2 v[64:65], v{vT0}, {sr(sWS,4)}, s{s_t0} offen{fl}")
    a("L_ydone:")
    stamp(a, o, 8)
    if single:
        a(f"s_cmp_ge_u32 s{s_cons}, 40")
        a("s_cbranch_scc1 L_fin")
        consumer(a, o, True)
        a("L_fin:")
    if o.stamps:
        stamp(a, o, 10)
        emit_stamps(a, o, "s2")
    a("L_end:")
    a("s_endpgm")

def second_kernel(a, o):
    a("s_cmp_ge_u32 s2, 40")
    a("s_cbranch_scc1 L_end2")
    a("s_load_dwordx2 s[24:25], s[0:1], 80")
    a("s_load_dwordx2 s[28:29], s[0:1], 96")
    a(f"v_lshrrev_b32 v{vT0}, 6, v0")
    a(f"s_mov_b32 s{s_cons}, s2")
    a(f"v_readfirstlane_b32 s{s_w}, v{vT0}")
    a("s_waitcnt lgkmcnt(0)")
    make_srd(a, sOUT, 24, 25, 2560)
    make_srd(a, sWS, 28, 29, W_SIZE)
    n0 = len(a.lines)
    class O: stamps = False
    consumer(a, O, False)
    a.lines[n0:] = [l.replace("L_end", "L_end2") for l in a.lines[n0:]]
    a("L_end2:")
    a("s_endpgm")

def f32bits(x):
    import struct
    return struct.unpack("<I", struct.pack("<f", x))[0]

def kd(name, vgpr):
    return f""".p2align 6
.amdhsa_kernel {name}
  .amdhsa_next_free_vgpr {vgpr}
  .amdhsa_next_free_sgpr 96
  .amdhsa_accum_offset {vgpr}
  .amdhsa_group_segment_fixed_size 0
  .amdhsa_kernarg_size 104
  .amdhsa_user_sgpr_count 2
  .amdhsa_user_sgpr_kernarg_segment_ptr 1
  .amdhsa_system_sgpr_workgroup_id_x 1
.end_amdhsa_kernel
"""

def generate(o):
    out = HEADER
    k1 = NAME + "_kernel"
    k2 = "final_reduce_kernel"
    if o.mode == "single":
        out += f"; @launch grid=(256,1,1) block=(1024,1,1) lds={L_TOTAL}\n"
    else:
        out += f"; @launch kernel={k1} grid=(256,1,1) block=(1024,1,1) lds={L_TOTAL}\n"
        out += f"; @launch kernel={k2} grid=(40,1,1) block=(1024,1,1) lds={L_TOTAL}\n"
    out += '.amdgcn_target "amdgcn-amd-amdhsa--gfx950"\n.text\n'
    out += f".globl {k1}\n.p2align 8\n.type {k1},@function\n{k1}:\n"
    a = Asm()
    main_kernel(a, o)
    out += a.text()
    if o.mode != "single":
        out += f".globl {k2}\n.p2align 8\n.type {k2},@function\n{k2}:\n"
        b = Asm()
        second_kernel(b, o)
        out += b.text()
    out += '.section .rodata,"a"\n' + kd(k1, 128)
    if o.mode != "single":
        out += kd(k2, 64)
    return out

if __name__ == "__main__":
    p = argparse.ArgumentParser()
    p.add_argument("-o", default="-")
    p.add_argument("--mode", default="two")
    p.add_argument("--nt", type=int, default=1)
    p.add_argument("--contig", type=int, default=1)
    p.add_argument("--stamps", type=int, default=0)
    o = p.parse_args()
    s = generate(o)
    if o.o == "-":
        sys.stdout.write(s)
    else:
        open(o.o, "w").write(s)
```

```python
import sys, argparse, math

NAME = "concat_heads__mha_block_cached__gqa_block_cached__decode"

HEADER = """; Kernarg layout for this problem (104 bytes, ptrs only, base s[0:1]):
"""

class Asm:
    def __init__(self):
        self.lines = []
        self.vm = []
    def __call__(self, s=""):
        for l in s.split("\n"):
            self.lines.append("    " + l.strip() if l.strip() and not l.strip().endswith(":") else l.strip())
    def c(self, s):
        self.lines.append("    ; " + s)
    def vmem(self, s, tag):
        self(s)
        self.vm.append(tag)
    def wait_vm(self, tag):
        idx = max(i for i, t in enumerate(self.vm) if t == tag)
        n = len(self.vm) - 1 - idx
        assert n <= 63
        self(f"s_waitcnt vmcnt({n})")
    def text(self):
        return "\n".join(self.lines) + "\n"

PSTR = 1552
L_PART = 0
L_QBUF = 16 * PSTR
L_ML = L_QBUF + 384
L_FIN = L_ML + 128
L_Y = L_FIN + 2048
YSTR = 3072
L_TOTAL = L_Y + 16 * YSTR

W_Y = 0
W_ML = 256 * 2560
W_SIZE = W_ML + 256 * 8

sK, sV, sWQ, sWO, sX, sWS, sOUT, sDBG = 32, 36, 40, 44, 48, 52, 56, 60
s_w, s_br, s_hd, s_sp, s_row, s_t0, s_t1, s_t2, s_off, s_c, s_m, s_l = range(64, 76)
s_u0, s_u1, s_u2 = 76, 77, 78
s_ex = 80
s_cons = 82
s_cnt = 83
s_st = 84

vK, vQ, vX, vO, vPW, vPR, vYW, vT0, vT1, vT2, vT3 = 1, 2, 3, 4, 5, 6, 7, 8, 9, 10, 11
vXV = 24
vMLo = 12
vT4, vT5 = 14, 15
vMask = 16
vB = 20
vS = 24
vBo = 20
vAcc = 40
vYacc = 32
vQp = 52
SLOT = [64, 76, 88, 100, 112, 52]

def r(b, n):
    return f"v[{b}:{b+n-1}]"
def sr(b, n):
    return f"s[{b}:{b+n-1}]"

def make_srd(a, d, base_lo, base_hi, size):
    a(f"s_mov_b32 s{d}, s{base_lo}")
    a(f"s_and_b32 s{d+1}, s{base_hi}, 0xffff")
    a(f"s_mov_b32 s{d+2}, {size}")
    a(f"s_mov_b32 s{d+3}, 0x20000")

def row16(a, op, regs):
    for ror in (8, 4, 2, 1):
        for x in regs:
            a(f"{op}_dpp v{x}, v{x}, v{x} row_ror:{ror} row_mask:0xf bank_mask:0xf")
        if len(regs) < 3:
            a(f"s_nop {2 - len(regs)}")

def stamp(a, o, idx):
    if not o.stamps:
        return
    a(f"s_memrealtime {sr(86 + 2 * (idx % 2), 2)}")
    a("s_waitcnt lgkmcnt(0)")
    a(f"v_writelane_b32 v125, s{86 + 2 * (idx % 2)}, {idx}")

def consumer(a, o, poll, endl):
    a.c("---- final reduction over the 128 partial rows of one branch, 32 columns")
    a(f"s_cmp_ge_u32 s{s_cons}, 20")
    a(f"s_cselect_b32 s{s_t0}, 1, 0")
    a(f"s_mul_i32 s{s_t1}, s{s_t0}, 20")
    a(f"s_sub_u32 s{s_t1}, s{s_cons}, s{s_t1}")
    a(f"s_mul_i32 s{s_t2}, s{s_t0}, {128 * 2560}")
    a(f"s_lshl_b32 s{s_off}, s{s_t1}, 7")
    a(f"s_add_u32 s{s_t2}, s{s_t2}, s{s_off}")
    a(f"s_lshl_b32 s{s_off}, s{s_t0}, 10")
    a(f"s_add_u32 s{s_off}, s{s_off}, {W_ML}")
    a(f"v_lshrrev_b32 v{vT0}, 3, v0")
    a(f"v_and_b32 v{vT1}, 7, v0")
    a(f"v_lshlrev_b32 v{vT1}, 4, v{vT1}")
    a(f"v_mul_u32_u24 v{vT2}, 2560, v{vT0}")
    a(f"v_add_u32 v{vT2}, v{vT2}, v{vT1}")
    a(f"v_lshlrev_b32 v{vT3}, 3, v{vT0}")
    fl = " sc1" if poll else ""
    if poll:
        a(f"s_mov_b32 s{s_cnt}, 0")
        a("L_poll:")
    a(f"buffer_load_dwordx4 v[32:35], v{vT2}, {sr(sWS,4)}, s{s_t2} offen{fl}")
    a(f"buffer_load_dwordx2 v[36:37], v{vT3}, {sr(sWS,4)}, s{s_off} offen{fl}")
    if poll:
        a(f"s_add_u32 s{s_cnt}, s{s_cnt}, 1")
        a("s_waitcnt vmcnt(0)")
        a("v_max3_u32 v38, v32, v33, v34")
        a("v_max3_u32 v39, v35, v36, v37")
        a("v_max_u32 v38, v38, v39")
        a("v_cmp_eq_u32 vcc, -1, v38")
        a(f"s_cmp_lt_u32 s{s_cnt}, 0x8000")
        a("s_cbranch_scc0 L_poll_done")
        a("s_cbranch_vccnz L_poll")
        a("L_poll_done:")
    else:
        a("s_waitcnt vmcnt(0)")
    stamp(a, o, 9)
    a.c("softmax weight of this row among the 4 splits of its head (lane groups xor 8, xor 16)")
    a("v_mov_b32 v38, v36")
    a("s_nop 1")
    a("v_max_f32_dpp v38, v38, v38 row_ror:8 row_mask:0xf bank_mask:0xf")
    a("s_nop 0")
    a("v_mov_b32 v39, v38")
    a("s_nop 1")
    a("v_permlane16_swap_b32 v38, v39")
    a("v_max_f32 v38, v38, v39")
    a("v_sub_f32 v36, v36, v38")
    a("v_exp_f32 v36, v36")
    a("s_nop 0")
    a("v_mul_f32 v37, v37, v36")
    a("s_nop 1")
    a("v_add_f32_dpp v37, v37, v37 row_ror:8 row_mask:0xf bank_mask:0xf")
    a("s_nop 0")
    a("v_mov_b32 v39, v37")
    a("s_nop 1")
    a("v_permlane16_swap_b32 v37, v39")
    a("v_add_f32 v37, v37, v39")
    a("v_rcp_f32 v37, v37")
    a("s_nop 0")
    a("v_mul_f32 v36, v36, v37")
    for i in range(4):
        a(f"v_mul_f32 v{32+i}, v{32+i}, v36")
    a.c("sum over the 8 rows of the wave")
    for i in range(4):
        a(f"v_add_f32_dpp v{32+i}, v{32+i}, v{32+i} row_ror:8 row_mask:0xf bank_mask:0xf")
    a("s_nop 1")
    a("v_permlane16_swap_b32 v32, v33")
    a("v_permlane16_swap_b32 v34, v35")
    a("v_add_f32 v32, v32, v33")
    a("v_add_f32 v34, v34, v35")
    a("s_nop 1")
    a("v_permlane32_swap_b32 v32, v34")
    a("v_add_f32 v32, v32, v34")
    a.c("LDS slot of this wave: 32 floats, position 4*(lane&7) + (lane>>4)")
    a(f"v_and_b32 v{vT0}, 63, v0")
    a(f"v_lshrrev_b32 v{vT0}, 4, v{vT0}")
    a(f"v_lshlrev_b32 v{vT0}, 2, v{vT0}")
    a(f"v_add_u32 v{vT0}, v{vT0}, v{vT1}")
    a(f"v_lshrrev_b32 v{vT2}, 6, v0")
    a(f"v_lshl_add_u32 v{vT0}, v{vT2}, 7, v{vT0}")
    a(f"ds_write_b32 v{vT0}, v32 offset:{L_FIN}")
    a("s_waitcnt lgkmcnt(0)")
    a("s_barrier")
    a(f"s_cmp_lg_u32 s{s_w}, 0")
    a(f"s_cbranch_scc1 {endl}")
    a.c("wave 0: lane = pos(0..31) + 32*half; each lane sums 8 wave slots")
    a(f"v_and_b32 v{vT0}, 31, v0")
    a(f"v_lshrrev_b32 v{vT2}, 5, v0")
    a(f"v_lshlrev_b32 v{vT3}, 2, v{vT0}")
    a(f"v_lshl_add_u32 v{vT3}, v{vT2}, 10, v{vT3}")
    for i in range(8):
        a(f"ds_read_b32 v{32+i}, v{vT3} offset:{L_FIN + 128 * i}")
    a.c("column of position p: 8*(p&3) + (p>>2)")
    a(f"v_and_b32 v{vT2}, 3, v{vT0}")
    a(f"v_lshrrev_b32 v{vT0}, 2, v{vT0}")
    a(f"v_lshl_add_u32 v{vT0}, v{vT2}, 3, v{vT0}")
    a(f"v_lshlrev_b32 v{vT0}, 1, v{vT0}")
    a(f"s_mul_i32 s{s_t0}, s{s_t0}, 1280")
    a(f"s_lshl_b32 s{s_t1}, s{s_t1}, 6")
    a(f"s_add_u32 s{s_t0}, s{s_t0}, s{s_t1}")
    a("s_waitcnt lgkmcnt(0)")
    a("v_add_f32 v32, v32, v33")
    a("v_add_f32 v34, v34, v35")
    a("v_add_f32 v36, v36, v37")
    a("v_add_f32 v38, v38, v39")
    a("v_add_f32 v32, v32, v34")
    a("v_add_f32 v36, v36, v38")
    a("v_add_f32 v32, v32, v36")
    a("v_mov_b32 v33, v32")
    a("s_nop 1")
    a("v_permlane32_swap_b32 v32, v33")
    a("v_add_f32 v32, v32, v33")
    a("v_cvt_pk_bf16_f32 v32, v32, v32")
    a("s_mov_b64 exec, 0xffffffff")
    a(f"buffer_store_short v32, v{vT0}, {sr(sOUT,4)}, s{s_t0} offen")

def emit_stamps(a, o, wgreg):
    if not o.stamps:
        return
    a.c("diagnostic: 16 time stamps per wave to ws + 1 MiB")
    a("s_mov_b64 exec, 0xffff")
    a(f"s_lshl_b32 s{s_t0}, {wgreg}, 10")
    a(f"s_lshl_b32 s{s_t1}, s{s_w}, 6")
    a(f"s_add_u32 s{s_t0}, s{s_t0}, s{s_t1}")
    a(f"s_add_u32 s{s_t0}, s{s_t0}, 0x100000")
    a("v_mbcnt_lo_u32_b32 v124, -1, 0")
    a("v_lshlrev_b32 v124, 2, v124")
    a(f"buffer_store_dword v125, v124, {sr(sWS,4)}, s{s_t0} offen")

def main_kernel(a, o):
    single = o.mode == "single"
    kv = " nt" if o.nt else ""
    a("s_cmp_ge_u32 s2, 256")
    a("s_cbranch_scc1 L_end")
    a("s_load_dwordx16 s[4:19], s[0:1], 0")
    a("s_load_dwordx8 s[20:27], s[0:1], 64")
    a("s_load_dwordx2 s[28:29], s[0:1], 96")
    if o.stamps:
        a("v_mov_b32 v125, 0")
    a.c("work split: branch = wg>>7, head = (wg&7) | ((wg>>5)&3)<<3, key split = (wg>>3)&3")
    a(f"s_lshr_b32 s{s_br}, s2, 7")
    a(f"s_and_b32 s{s_t0}, s2, 7")
    a(f"s_bfe_u32 s{s_t1}, s2, 0x20005")
    a(f"s_lshl_b32 s{s_t1}, s{s_t1}, 3")
    a(f"s_or_b32 s{s_hd}, s{s_t0}, s{s_t1}")
    a(f"s_bfe_u32 s{s_sp}, s2, 0x20003")
    a(f"v_lshrrev_b32 v{vT0}, 6, v0")
    a(f"v_and_b32 v{vT1}, 7, v0")
    a(f"v_readfirstlane_b32 s{s_w}, v{vT0}")
    a(f"v_bfe_u32 v{vT2}, v0, 4, 2")
    a(f"v_bfe_u32 v{vT3}, v0, 3, 1")
    a(f"v_lshl_add_u32 v{vT4}, v{vT3}, 2, v{vT2}")
    a(f"v_mad_u32_u24 v{vT5}, v{vT0}, 40, v{vT4}")
    a(f"v_lshlrev_b32 v{vX}, 1, v{vT5}")
    a(f"v_mul_u32_u24 v{vQ}, 12288, v{vT5}")
    a(f"v_lshl_add_u32 v{vQ}, v{vT1}, 4, v{vQ}")
    a(f"s_mul_i32 s{s_t2}, s{s_hd}, 384")
    a(f"s_cmp_eq_u32 s{s_br}, 0")
    a("s_waitcnt lgkmcnt(0)")
    stamp(a, o, 0)
    if o.stamps:
        a(f"s_cmp_eq_u32 s{s_br}, 0")
    a("s_cselect_b64 s[4:5], s[4:5], s[14:15]")
    a("s_cselect_b64 s[10:11], s[10:11], s[20:21]")
    a("s_cselect_b64 s[6:7], s[6:7], s[16:17]")
    a("s_cselect_b64 s[8:9], s[8:9], s[18:19]")
    a("s_cselect_b64 s[12:13], s[12:13], s[22:23]")
    make_srd(a, sX, 4, 5, 1280)
    a(f"s_add_u32 s10, s10, s{s_t2}")
    a("s_addc_u32 s11, s11, 0")
    a(f"s_sub_u32 s{s_t2}, {640 * 12288}, s{s_t2}")
    a(f"s_mov_b32 s{sWQ}, s10")
    a(f"s_and_b32 s{sWQ+1}, s11, 0xffff")
    a(f"s_mov_b32 s{sWQ+2}, s{s_t2}")
    a(f"s_mov_b32 s{sWQ+3}, 0x20000")
    make_srd(a, sWS, 28, 29, W_SIZE if not o.stamps else 0x200000)
    a.c("partial row index of this workgroup")
    a(f"s_lshl_b32 s{s_row}, s{s_br}, 5")
    a(f"s_add_u32 s{s_row}, s{s_row}, s{s_hd}")
    a(f"s_lshl_b32 s{s_row}, s{s_row}, 2")
    a(f"s_add_u32 s{s_row}, s{s_row}, s{s_sp}")
    if single:
        a.c("wave 15 marks this workgroup's hand-off words as not yet written")
        a(f"s_cmp_lg_u32 s{s_w}, 15")
        a("s_cbranch_scc1 L_noclear")
        a(f"v_and_b32 v{vT5}, 63, v0")
        a(f"v_lshlrev_b32 v{vT5}, 4, v{vT5}")
        for i in range(4):
            a(f"v_mov_b32 v{32+i}, -1")
        a(f"s_mul_i32 s{s_t0}, s{s_row}, 2560")
        a(f"s_lshl_b32 s{s_t1}, s{s_row}, 3")
        a(f"s_add_u32 s{s_t1}, s{s_t1}, {W_ML}")
        a(f"buffer_store_dwordx4 v[32:35], v{vT5}, {sr(sWS,4)}, s{s_t0} offen sc1")
        a(f"buffer_store_dwordx4 v[32:35], v{vT5}, {sr(sWS,4)}, s{s_t0} offen offset:1024 sc1")
        a("s_mov_b64 exec, 0xffffffff")
        a(f"buffer_store_dwordx4 v[32:35], v{vT5}, {sr(sWS,4)}, s{s_t0} offen offset:2048 sc1")
        a("s_mov_b64 exec, 1")
        a(f"buffer_store_dwordx2 v[32:33], v{vT5}, {sr(sWS,4)}, s{s_t1} offen sc1")
        a("s_mov_b64 exec, -1")
        a("L_noclear:")
    for t in range(5):
        a.vmem(f"buffer_load_ushort v{vXV+t}, v{vX}, {sr(sX,4)}, 0 offen offset:{16*t}", f"X{t}")
    for t in range(5):
        if t == 0:
            so = "0"
        else:
            a(f"s_mov_b32 s{s_off}, {t * 8 * 12288}")
            so = f"s{s_off}"
        for j in range(3):
            a.vmem(f"buffer_load_dwordx4 {r(SLOT[t]+4*j,4)}, v{vQ}, {sr(sWQ,4)}, {so} offen offset:{128*j}", f"WQ{t}")
    stamp(a, o, 1)
    a.c("remaining descriptors and lane constants")
    a(f"s_mul_i32 s{s_t0}, s{s_hd}, 1572864")
    a(f"s_mul_i32 s{s_t1}, s{s_sp}, 393216")
    a(f"s_add_u32 s{s_t0}, s{s_t0}, s{s_t1}")
    a(f"s_add_u32 s6, s6, s{s_t0}")
    a("s_addc_u32 s7, s7, 0")
    a(f"s_add_u32 s8, s8, s{s_t0}")
    a("s_addc_u32 s9, s9, 0")
    make_srd(a, sK, 6, 7, 393216)
    make_srd(a, sV, 8, 9, 393216)
    a(f"s_mul_i32 s{s_t0}, s{s_hd}, 245760")
    a(f"s_add_u32 s12, s12, s{s_t0}")
    a("s_addc_u32 s13, s13, 0")
    make_srd(a, sWO, 12, 13, 245760)
    make_srd(a, sOUT, 24, 25, 2560)
    make_srd(a, sDBG, 26, 27, 256)
    wstr, gstr = (24576, 3072) if o.contig else (3072, 49152)
    a(f"v_mul_u32_u24 v{vK}, 384, v{vT4}")
    a(f"v_lshl_add_u32 v{vK}, v{vT1}, 4, v{vK}")
    a(f"s_mul_i32 s{s_t0}, s{s_w}, {wstr}")
    a(f"v_add_u32 v{vK}, s{s_t0}, v{vK}")
    a.c("selection masks: element (lane&7) of the 8 packed bf16")
    a(f"v_and_b32 v{vT5}, 1, v0")
    a(f"v_lshlrev_b32 v{vT5}, 4, v{vT5}")
    a(f"v_mov_b32 v{vT0}, 0xffff")
    a(f"v_lshlrev_b32 v{vT5}, v{vT5}, v{vT0}")
    a(f"v_lshrrev_b32 v{vT0}, 1, v{vT1}")
    for i in range(4):
        a(f"v_cmp_eq_u32 vcc, {i}, v{vT0}")
        a("s_nop 1")
        a(f"v_cndmask_b32 v{vMask+i}, 0, v{vT5}, vcc")
    a(f"v_add_u32 v{vMLo}, -1, v{vT3}")
    a.c("LDS partial write address: w*PSTR + b*768 + (G&1)*128 + c*16")
    a(f"s_mul_i32 s{s_t0}, s{s_w}, {PSTR}")
    a(f"v_mul_u32_u24 v{vPW}, 768, v{vT3}")
    a(f"v_and_b32 v{vT0}, 1, v{vT2}")
    a(f"v_lshl_add_u32 v{vPW}, v{vT0}, 7, v{vPW}")
    a(f"v_lshl_add_u32 v{vPW}, v{vT1}, 4, v{vPW}")
    a(f"v_add_u32 v{vPW}, s{s_t0}, v{vPW}")
    a.c("LDS partial read address: n*PSTR + (G>>1)*768 + (12 w + 2 (G&1))*4")
    a(f"v_and_b32 v{vT5}, 15, v0")
    a(f"v_mul_u32_u24 v{vPR}, {PSTR}, v{vT5}")
    a(f"v_lshl_add_u32 v{vPR}, v{vT0}, 3, v{vPR}")
    a(f"v_lshrrev_b32 v{vT4}, 1, v{vT2}")
    a(f"v_mul_u32_u24 v{vX}, 768, v{vT4}")
    a(f"s_mul_i32 s{s_t0}, s{s_w}, 48")
    a(f"v_add3_u32 v{vPR}, v{vPR}, v{vX}, s{s_t0}")
    a.c("rho(G) = 2 (G&1) + (G>>1); wo lane offset = 8 rho * 1280 + n * 16")
    a(f"v_lshl_add_u32 v{vT4}, v{vT0}, 1, v{vT4}")
    a(f"v_mul_u32_u24 v{vO}, 10240, v{vT4}")
    a(f"v_lshl_add_u32 v{vO}, v{vT5}, 4, v{vO}")
    a(f"v_lshlrev_b32 v{vX}, 4, v{vT4}")
    a.c("row base of step t: u = 3 w + t, d0 = 32 (u>>3) + (u&7)")
    for t, su in enumerate((s_u0, s_u1, s_u2)):
        a(f"s_mul_i32 s{s_t0}, s{s_w}, 3")
        a(f"s_add_u32 s{s_t0}, s{s_t0}, {t}")
        a(f"s_lshr_b32 s{s_t1}, s{s_t0}, 3")
        a(f"s_lshl_b32 s{s_t1}, s{s_t1}, 5")
        a(f"s_and_b32 s{s_t0}, s{s_t0}, 7")
        a(f"s_add_u32 s{su}, s{s_t0}, s{s_t1}")
    a.c("LDS y write address: w*YSTR + b*512 + G*128 + c*16")
    a(f"s_mul_i32 s{s_t0}, s{s_w}, {YSTR}")
    a(f"v_lshlrev_b32 v{vYW}, 9, v{vT3}")
    a(f"v_lshl_add_u32 v{vYW}, v{vT2}, 7, v{vYW}")
    a(f"v_lshl_add_u32 v{vYW}, v{vT1}, 4, v{vYW}")
    a(f"v_add_u32 v{vYW}, s{s_t0}, v{vYW}")
    a(f"s_mov_b32 s{s_c}, {hex(f32bits(math.log2(math.e) / math.sqrt(192.0)))}")
    a(f"s_mov_b32 s{s_ex}, 0x00ff00ff")
    a(f"s_mov_b32 s{s_ex+1}, 0xff00ff00")

    def kvload(kind, t, slot):
        srd = sK if kind == "K" else sV
        if t == 0:
            so = "0"
        else:
            a(f"s_mov_b32 s{s_off}, {t * gstr}")
            so = f"s{s_off}"
        for j in range(3):
            a.vmem(f"buffer_load_dwordx4 {r(SLOT[slot]+4*j,4)}, v{vK}, {sr(srd,4)}, {so} offen offset:{128*j}{kv}", f"{kind}{t}")

    def woload(cb, slot):
        for t, su in enumerate((s_u0, s_u1, s_u2)):
            a.vmem(f"buffer_load_dwordx4 {r(SLOT[slot]+4*t,4)}, v{vO}, {sr(sWO,4)}, s{su} offen offset:{256*cb}", f"WO{cb}")

    def mfma3(slot, first):
        for j in range(3):
            c = "0" if first else r(vAcc + 4 * j, 4)
            a(f"v_mfma_f32_16x16x32_bf16 {r(vAcc+4*j,4)}, {r(SLOT[slot]+4*j,4)}, {r(vB,4)}, {c}")

    def write_partials():
        a(f"s_mov_b64 exec, {sr(s_ex,2)}")
        for j in range(3):
            a(f"ds_write_b128 v{vPW}, {r(vAcc+4*j,4)} offset:{L_PART + 256*j}")
        a("s_mov_b64 exec, -1")

    def read_partials():
        for t in range(3):
            a(f"ds_read_b64 v[{32+2*t}:{33+2*t}], v{vPR} offset:{L_PART + 16*t}")

    def fold_halves():
        for t in range(3):
            a(f"v_permlane32_swap_b32 v{32+2*t}, v{33+2*t}")
        for t in range(3):
            a(f"v_add_f32 v{32+2*t}, v{32+2*t}, v{33+2*t}")

    a.c("======== q = x @ wq for this head")
    for t in range(5):
        a.wait_vm(f"WQ{t}")
        if t == 0:
            stamp(a, o, 2)
        a(f"v_lshl_or_b32 v{vT0}, v{vXV+t}, 16, v{vXV+t}")
        for i in range(4):
            a(f"v_and_b32 v{vB+i}, v{vMask+i}, v{vT0}")
        a("s_nop 1")
        mfma3(t, t == 0)
        kvload("K", t, t)
    if single:
        a.c("wave 15: its marker stores are older than the loads waited for above; count this workgroup as cleared")
        a(f"s_cmp_lg_u32 s{s_w}, 15")
        a("s_cbranch_scc1 L_nosig")
        a("s_mov_b64 exec, 1")
        a(f"v_mov_b32 v{vT0}, 0")
        a(f"v_mov_b32 v{vT1}, 1")
        a(f"buffer_atomic_add v{vT1}, v{vT0}, {sr(sDBG,4)}, 0 offen sc1")
        a("s_mov_b64 exec, -1")
        a("L_nosig:")
    a("s_nop 4")
    write_partials()
    for i in range(8):
        a(f"v_mov_b32 v{vS+i}, 0")
    a("s_waitcnt lgkmcnt(0)")
    a("s_barrier")
    read_partials()
    for t, su in enumerate((s_u0, s_u1, s_u2)):
        a(f"s_lshl_b32 s{s_t0}, s{su}, 1")
        a(f"v_add_u32 v{vT0+t}, s{s_t0}, v{vX}")
    a("s_waitcnt lgkmcnt(0)")
    fold_halves()
    row16(a, "v_add_f32", [32, 34, 36])
    for t in range(3):
        a(f"v_cvt_pk_bf16_f32 v{32+2*t}, v{32+2*t}, v{32+2*t}")
    for t in range(3):
        a(f"ds_write_b16 v{vT0+t}, v{32+2*t} offset:{L_QBUF}")
    a(f"v_and_b32 v{vT3}, 7, v0")
    a(f"v_lshlrev_b32 v{vT3}, 4, v{vT3}")
    for su in (s_u0, s_u1, s_u2):
        a(f"s_mul_i32 s{su}, s{su}, 1280")
    a("s_waitcnt lgkmcnt(0)")
    a("s_barrier")
    for j in range(3):
        a(f"ds_read_b128 {r(vQp+4*j,4)}, v{vT3} offset:{L_QBUF + 128*j}")
    a("s_waitcnt lgkmcnt(0)")
    stamp(a, o, 3)

    a.c("======== scores")
    vslot = {}
    for t in range(8):
        slot = t % 5
        a.wait_vm(f"K{t}")
        for j in range(12):
            a(f"v_dot2c_f32_bf16 v{vS+t}, v{SLOT[slot]+j}, v{vQp+j}")
        if t < 3:
            kvload("K", t + 5, slot)
        else:
            kvload("V", t - 3, slot)
            vslot[t - 3] = slot
    kvload("V", 5, 5)
    vslot[5] = 5
    stamp(a, o, 4)
    a.c("======== softmax numerators over this wave's 64 keys")
    regs = [vS + i for i in range(8)]
    for ctl in ("quad_perm:[1,0,3,2]", "quad_perm:[2,3,0,1]", "row_half_mirror"):
        for x in regs:
            a(f"v_add_f32_dpp v{x}, v{x}, v{x} {ctl} row_mask:0xf bank_mask:0xf")
    a(f"v_max3_f32 v{vT0}, v{vS}, v{vS+1}, v{vS+2}")
    a(f"v_max3_f32 v{vT1}, v{vS+3}, v{vS+4}, v{vS+5}")
    a(f"v_max3_f32 v{vT0}, v{vT0}, v{vS+6}, v{vS+7}")
    a(f"v_max_f32 v{vT0}, v{vT0}, v{vT1}")
    for ctl in ("row_ror:8 row_mask:0xf", "row_bcast:15 row_mask:0xa", "row_bcast:31 row_mask:0xc"):
        a("s_nop 1")
        a(f"v_max_f32_dpp v{vT0}, v{vT0}, v{vT0} {ctl} bank_mask:0xf")
    a(f"v_mul_f32 v{vT0}, s{s_c}, v{vT0}")
    a("s_nop 0")
    a(f"v_readlane_b32 s{s_m}, v{vT0}, 63")
    a(f"v_mov_b32 v{vT1}, s{s_c}")
    a("s_nop 0")
    for x in regs:
        a(f"v_fma_f32 v{x}, v{x}, v{vT1}, -s{s_m}")
    for x in regs:
        a(f"v_exp_f32 v{x}, v{x}")
    a("s_nop 0")
    a(f"v_add_f32 v{vT0}, v{vS}, v{vS+1}")
    a(f"v_add_f32 v{vT1}, v{vS+2}, v{vS+3}")
    a(f"v_add_f32 v{vT2}, v{vS+4}, v{vS+5}")
    a(f"v_add_f32 v{vT3}, v{vS+6}, v{vS+7}")
    a(f"v_add_f32 v{vT0}, v{vT0}, v{vT1}")
    a(f"v_add_f32 v{vT2}, v{vT2}, v{vT3}")
    a(f"v_add_f32 v{vT0}, v{vT0}, v{vT2}")
    for x in regs:
        a(f"v_cvt_pk_bf16_f32 v{x}, v{x}, v{x}")
    for ctl in ("row_ror:8 row_mask:0xf", "row_bcast:15 row_mask:0xa", "row_bcast:31 row_mask:0xc"):
        a(f"v_add_f32_dpp v{vT0}, v{vT0}, v{vT0} {ctl} bank_mask:0xf")
        a("s_nop 1")
    a(f"v_readlane_b32 s{s_l}, v{vT0}, 63")
    a(f"v_mov_b32 v{vT2}, s{s_m}")
    a(f"s_lshl_b32 s{s_t0}, s{s_w}, 3")
    a(f"v_mov_b32 v{vT3}, s{s_l}")
    a(f"v_mov_b32 v{vT1}, s{s_t0}")
    a(f"ds_write_b64 v{vT1}, v[{vT2}:{vT3}] offset:{L_ML}")

    a.c("======== o = p @ V")
    woslot = {}
    if single:
        a(f"s_mov_b32 s{s_cons}, s2")
    for t in range(8):
        slot = vslot[t]
        for i in range(4):
            a(f"v_and_b32 v{vB+i}, v{vMask+i}, v{vS+t}")
        a.wait_vm(f"V{t}")
        a("s_nop 0")
        mfma3(slot, t == 0)
        if single and t == 2:
            a.c("reducer workgroups: wave 0 fetches the cleared-count")
            a(f"s_cmp_ge_u32 s{s_cons}, 40")
            a("s_cbranch_scc1 L_nochk0")
            a(f"s_cmp_lg_u32 s{s_w}, 0")
            a("s_cbranch_scc1 L_nochk0")
            a(f"v_mov_b32 v{vT4}, 0")
            a(f"buffer_load_dword v{vT5}, v{vT4}, {sr(sDBG,4)}, 0 offen sc1")
            a("L_nochk0:")
        if t < 2:
            kvload("V", t + 6, slot)
            vslot[t + 6] = slot
        elif t < 7:
            woload(t - 2, slot)
            woslot[t - 2] = slot
    stamp(a, o, 5)
    a(f"v_and_b32 v{vT0}, 15, v0")
    a(f"v_lshlrev_b32 v{vT0}, 3, v{vT0}")
    a("s_nop 4")
    write_partials()
    if single:
        a.c("reducer workgroups must not look at hand-off words before every workgroup has cleared its own")
        a(f"s_cmp_ge_u32 s{s_cons}, 40")
        a("s_cbranch_scc1 L_nochk1")
        a(f"s_cmp_lg_u32 s{s_w}, 0")
        a("s_cbranch_scc1 L_nochk1")
        a.wait_vm("WO0")
        a(f"s_mov_b32 s{s_cnt}, 0")
        a("L_chk:")
        a(f"v_readfirstlane_b32 s{s_t0}, v{vT5}")
        a(f"s_add_u32 s{s_cnt}, s{s_cnt}, 1")
        a(f"s_cmp_ge_u32 s{s_t0}, 256")
        a("s_cbranch_scc1 L_nochk1")
        a(f"s_cmp_ge_u32 s{s_cnt}, 0x8000")
        a("s_cbranch_scc1 L_nochk1")
        a(f"buffer_load_dword v{vT5}, v{vT4}, {sr(sDBG,4)}, 0 offen sc1")
        a("s_waitcnt vmcnt(0)")
        a("s_branch L_chk")
        a("L_nochk1:")
    a("s_waitcnt lgkmcnt(0)")
    a("s_barrier")
    stamp(a, o, 6)
    a(f"ds_read_b64 v[38:39], v{vT0} offset:{L_ML}")
    read_partials()
    a("s_waitcnt lgkmcnt(3)")
    a(f"v_mov_b32 v{vT2}, v38")
    a("s_nop 1")
    row16(a, "v_max_f32", [vT2])
    a(f"v_sub_f32 v38, v38, v{vT2}")
    a("v_exp_f32 v38, v38")
    a("s_waitcnt lgkmcnt(0)")
    fold_halves()
    a(f"v_mul_f32 v{vT3}, v39, v38")
    for t in range(3):
        a(f"v_mul_f32 v{32+2*t}, v{32+2*t}, v38")
    row16(a, "v_add_f32", [vT3, 32, 34, 36])
    for t in range(3):
        a(f"v_cvt_pk_bf16_f32 v{32+2*t}, v{32+2*t}, v{32+2*t}")
    for t in range(3):
        a(f"v_and_b32 v{32+2*t}, v{vMLo}, v{32+2*t}")
    for t in range(3):
        for i in range(4):
            a(f"v_and_b32 v{vBo+4*t+i}, v{vMask+i}, v{32+2*t}")
    fl = " sc1" if single else ""
    a.c("wave 0 publishes (max, sum) of this key split")
    a(f"s_cmp_lg_u32 s{s_w}, 0")
    a("s_cbranch_scc1 L_noml")
    a("s_mov_b64 exec, 1")
    a(f"s_lshl_b32 s{s_t1}, s{s_row}, 3")
    a(f"s_add_u32 s{s_t1}, s{s_t1}, {W_ML}")
    a(f"v_mov_b32 v{vT0}, 0")
    if single:
        a(f"v_min_u32 v{vT2}, -2, v{vT2}")
        a(f"v_min_u32 v{vT3}, -2, v{vT3}")
    a(f"buffer_store_dwordx2 v[{vT2}:{vT3}], v{vT0}, {sr(sWS,4)}, s{s_t1} offen{fl}")
    a("s_mov_b64 exec, -1")
    a("L_noml:")
    a.c("======== y = o @ wo (this wave's 12 rows)")
    for cb in range(5):
        a.wait_vm(f"WO{cb}")
        for t in range(3):
            c = "0" if t == 0 else r(vYacc + 4 * cb, 4)
            a(f"v_mfma_f32_16x16x32_bf16 {r(vYacc+4*cb,4)}, {r(SLOT[woslot[cb]]+4*t,4)}, {r(vBo+4*t,4)}, {c}")
    stamp(a, o, 7)
    a("s_nop 4")
    for p in range(2):
        for i in range(4):
            a(f"v_mov_b32_dpp v{vYacc+8*p+i}, v{vYacc+8*p+4+i} row_ror:8 row_mask:0xf bank_mask:0xc")
    a(f"ds_write_b128 v{vYW}, {r(vYacc,4)} offset:{L_Y}")
    a(f"ds_write_b128 v{vYW}, {r(vYacc+8,4)} offset:{L_Y + 1024}")
    a(f"ds_write_b128 v{vYW}, {r(vYacc+16,4)} offset:{L_Y + 2048}")
    a(f"v_lshlrev_b32 v{vT0}, 3, v0")
    a(f"s_mul_i32 s{s_t0}, s{s_row}, 2560")
    a("s_waitcnt lgkmcnt(0)")
    a("s_barrier")
    a(f"s_cmp_ge_u32 s{s_w}, 5")
    a("s_cbranch_scc1 L_ydone")
    a(f"v_add_u32 v{vT1}, {L_Y}, v{vT0}")
    for i in range(16):
        a(f"ds_read_b64 v[{64+2*i}:{65+2*i}], v{vT1} offset:{YSTR*i}")
    for i in range(8):
        a(f"s_waitcnt lgkmcnt({14-2*i})")
        a(f"v_pk_add_f32 v[{64+4*i}:{65+4*i}], v[{64+4*i}:{65+4*i}], v[{66+4*i}:{67+4*i}]")
    for st in (4, 8, 16):
        for i in range(0, 32, 2 * st):
            a(f"v_pk_add_f32 v[{64+i}:{65+i}], v[{64+i}:{65+i}], v[{64+i+st}:{65+i+st}]")
    if single:
        a("v_min_u32 v64, -2, v64")
        a("v_min_u32 v65, -2, v65")
    a(f"buffer_store_dwordx2 v[64:65], v{vT0}, {sr(sWS,4)}, s{s_t0} offen{fl}")
    a("L_ydone:")
    stamp(a, o, 8)
    if single:
        a(f"s_cmp_ge_u32 s{s_cons}, 40")
        a("s_cbranch_scc1 L_fin")
        consumer(a, o, True, "L_fin")
        a("L_fin:")
    if o.stamps:
        stamp(a, o, 10)
        emit_stamps(a, o, "s2")
    a("L_end:")
    a("s_endpgm")

def second_kernel(a, o):
    a("s_cmp_ge_u32 s2, 40")
    a("s_cbranch_scc1 L_end2")
    a("s_load_dwordx2 s[24:25], s[0:1], 80")
    a("s_load_dwordx2 s[28:29], s[0:1], 96")
    a(f"v_lshrrev_b32 v{vT0}, 6, v0")
    a(f"s_mov_b32 s{s_cons}, s2")
    a(f"v_readfirstlane_b32 s{s_w}, v{vT0}")
    a("s_waitcnt lgkmcnt(0)")
    make_srd(a, sOUT, 24, 25, 2560)
    make_srd(a, sWS, 28, 29, W_SIZE)
    n0 = len(a.lines)
    class O: stamps = False
    consumer(a, O, False, "L_end2")
    a("L_end2:")
    a("s_endpgm")

def f32bits(x):
    import struct
    return struct.unpack("<I", struct.pack("<f", x))[0]

def kd(name, vgpr):
    return f""".p2align 6
.amdhsa_kernel {name}
  .amdhsa_next_free_vgpr {vgpr}
  .amdhsa_next_free_sgpr 96
  .amdhsa_accum_offset {vgpr}
  .amdhsa_group_segment_fixed_size 0
  .amdhsa_kernarg_size 104
  .amdhsa_user_sgpr_count 2
  .amdhsa_user_sgpr_kernarg_segment_ptr 1
  .amdhsa_system_sgpr_workgroup_id_x 1
.end_amdhsa_kernel
"""

def generate(o):
    out = HEADER
    k1 = NAME + "_kernel"
    k2 = "final_reduce_kernel"
    if o.mode == "single":
        out += f"; @launch grid=(256,1,1) block=(1024,1,1) lds={L_TOTAL}\n"
    else:
        out += f"; @launch kernel={k1} grid=(256,1,1) block=(1024,1,1) lds={L_TOTAL}\n"
        out += f"; @launch kernel={k2} grid=(40,1,1) block=(1024,1,1) lds={L_TOTAL}\n"
    out += '.amdgcn_target "amdgcn-amd-amdhsa--gfx950"\n.text\n'
    out += f".globl {k1}\n.p2align 8\n.type {k1},@function\n{k1}:\n"
    a = Asm()
    main_kernel(a, o)
    out += a.text()
    if o.mode != "single":
        out += f".globl {k2}\n.p2align 8\n.type {k2},@function\n{k2}:\n"
        b = Asm()
        second_kernel(b, o)
        out += b.text()
    out += '.section .rodata,"a"\n' + kd(k1, 128)
    if o.mode != "single":
        out += kd(k2, 64)
    return out

if __name__ == "__main__":
    p = argparse.ArgumentParser()
    p.add_argument("-o", default="-")
    p.add_argument("--mode", default="two")
    p.add_argument("--nt", type=int, default=1)
    p.add_argument("--contig", type=int, default=1)
    p.add_argument("--stamps", type=int, default=0)
    o = p.parse_args()
    s = generate(o)
    if o.o == "-":
        sys.stdout.write(s)
    else:
        open(o.o, "w").write(s)
```

```python
import sys, argparse, math, struct

NAME = "concat_heads__mha_block_cached__gqa_block_cached__decode"

HEADER = """; Kernarg layout for this problem (104 bytes, ptrs only, base s[0:1]):
"""

class Asm:
    def __init__(self):
        self.lines = []
    def __call__(self, s=""):
        for l in s.split("\n"):
            l = l.strip()
            self.lines.append("    " + l if l and not l.endswith(":") else l)
    def c(self, s):
        self.lines.append("    ; " + s)
    def text(self):
        return "\n".join(self.lines) + "\n"

PSTR = 1536
L_QP = 0
L_OP = 10 * PSTR
L_QBUF = 14 * PSTR
L_ML = L_QBUF + 384
L_CNT = L_ML + 32
L_FIN = L_CNT + 32
L_TOTAL = L_FIN + 2048

YROW = 2560
W_ML = 256 * YROW
W_Q = W_ML + 256 * 8
W_SIZE = W_Q + 256 * 768

sK, sV, sWQ, sWO, sX, sWS, sOUT, sDBG = 32, 36, 40, 44, 48, 52, 56, 60
s_w, s_br, s_hd, s_sp, s_row, s_t0, s_t1, s_t2, s_off, s_c, s_m, s_l = range(64, 76)
s_a, s_cnt = 76, 77
s_ex = 78
s_f = 80
s_sel0, s_sel1 = 84, 85
s_st = 86
s_yo, s_mn, s_base, s_sw = 90, 91, 92, 93

vA, vPW, vC, vKap, vST, vT0, vT1 = 1, 2, 3, 4, 5, 6, 7
vMask = 12
vAcc = 16
sB = 8
vS = 28
vQ = 36
vL, vU0, vU1, vU2, vU3 = 48, 49, 50, 51, 52
vSc = 54
SRING, SR = 56, 6
vX = 8
aB = 28
ARING = 32

def r(b, n):
    return f"v[{b}:{b+n-1}]"
def sr(b, n):
    return f"s[{b}:{b+n-1}]"
def f32bits(x):
    return struct.unpack("<I", struct.pack("<f", x))[0]

def make_srd(a, d, lo, size):
    a(f"s_mov_b32 s{d}, s{lo}")
    a(f"s_and_b32 s{d+1}, s{lo+1}, 0xffff")
    a(f"s_mov_b32 s{d+2}, {size}")
    a(f"s_mov_b32 s{d+3}, 0x20000")

def stamp(a, o, idx):
    if not o.stamps:
        return
    s = s_st + 2 * (idx % 2)
    a(f"s_memrealtime {sr(s, 2)}")
    a("s_waitcnt lgkmcnt(0)")
    a(f"v_writelane_b32 v{vST}, s{s}, {idx}")

def common_srds(a, o):
    make_srd(a, sWS, 28, W_SIZE if not o.stamps else 0x200000)
    make_srd(a, sOUT, 24, 2560)
    make_srd(a, sDBG, 26, 256)

def lane_consts(a, slot_sgpr, base):
    a.c("selection masks: element (lane&7) of the 8 packed bf16")
    a(f"v_and_b32 v{vT0}, 1, v0")
    a(f"v_lshlrev_b32 v{vT0}, 4, v{vT0}")
    a(f"v_mov_b32 v{vT1}, 0xffff")
    a(f"v_lshlrev_b32 v{vT0}, v{vT0}, v{vT1}")
    a(f"v_lshrrev_b32 v{vT1}, 1, v{vC}")
    for i in range(4):
        a(f"v_cmp_eq_u32 vcc, {i}, v{vT1}")
        a("s_nop 1")
        a(f"v_cndmask_b32 v{vMask+i}, 0, v{vT0}, vcc")
    a.c("partial write address: slot*PSTR + b*768 + (G&1)*128 + c*16")
    a(f"s_mul_i32 s{s_t0}, s{slot_sgpr}, {PSTR}")
    a(f"s_add_u32 s{s_t0}, s{s_t0}, {base}")
    a(f"v_lshrrev_b32 v{vT0}, 2, v{vKap}")
    a(f"v_mul_u32_u24 v{vPW}, 768, v{vT0}")
    a(f"v_and_b32 v{vT0}, 1, v{vKap}")
    a(f"v_lshl_add_u32 v{vPW}, v{vT0}, 7, v{vPW}")
    a(f"v_lshl_add_u32 v{vPW}, v{vC}, 4, v{vPW}")
    a(f"v_add_u32 v{vPW}, s{s_t0}, v{vPW}")
    a(f"s_mov_b32 s{s_ex}, 0x00ff00ff")
    a(f"s_mov_b32 s{s_ex+1}, 0xff00ff00")

def write_partials(a):
    a(f"s_mov_b64 exec, {sr(s_ex,2)}")
    for j in range(3):
        a(f"ds_write_b128 v{vPW}, {r(vAcc+4*j,4)} offset:{256*j}")
    a("s_mov_b64 exec, -1")

def read_ml(a):
    a(f"ds_read_b64 v[8:9], v{vT0} offset:{L_ML}")
    a("s_waitcnt lgkmcnt(0)")
    a("v_max_f32_dpp v10, v8, v8 quad_perm:[1,0,3,2] row_mask:0xf bank_mask:0xf")
    a("s_nop 1")
    a("v_max_f32_dpp v10, v10, v10 quad_perm:[2,3,0,1] row_mask:0xf bank_mask:0xf")
    a("v_sub_f32 v8, v8, v10")
    a("v_exp_f32 v8, v8")
    a("s_nop 0")

def stream(a, o):
    W = o.win
    kv = " nt" if o.nt else ""
    a("L_stream:")
    if o.prio:
        a(f"s_setprio {o.prio}")
    a(f"v_mul_u32_u24 v{vA}, 384, v{vKap}")
    a(f"v_lshl_add_u32 v{vA}, v{vC}, 4, v{vA}")
    a(f"s_mul_i32 s{s_t0}, s{s_sw}, 98304")
    a(f"v_add_u32 v{vA}, s{s_t0}, v{vA}")
    a(f"s_mul_i32 s{s_t0}, s{s_hd}, 1572864")
    a(f"s_mul_i32 s{s_t1}, s{s_sp}, 393216")
    a(f"s_add_u32 s{s_t0}, s{s_t0}, s{s_t1}")
    a("s_waitcnt lgkmcnt(0)")
    stamp(a, o, 0)
    a(f"s_cmp_eq_u32 s{s_br}, 0")
    a("s_cselect_b64 s[6:7], s[6:7], s[16:17]")
    a("s_cselect_b64 s[8:9], s[8:9], s[18:19]")
    a(f"s_add_u32 s6, s6, s{s_t0}")
    a("s_addc_u32 s7, s7, 0")
    make_srd(a, sK, 6, 393216)

    seq = []
    for c in range(4):
        seq += [("K", 8 * c + g) for g in range(8)] + [("V", 8 * c + g) for g in range(8)]
    loads = [(k, g, j) for (k, g) in seq for j in range(3)]
    def slot(n):
        return SRING + 4 * (n % (3 * SR))

    def issue(n):
        k, g, j = loads[n]
        w = o.win0 if n < 3 * SR else W
        if n >= w:
            a(f"s_waitcnt vmcnt({w-1})")
        if j == 0 and g:
            a(f"s_mov_b32 s{s_off}, {g * 3072}")
        so = f"s{s_off}" if g else "0"
        a(f"buffer_load_dwordx4 {r(slot(n),4)}, v{vA}, {sr(sK if k == 'K' else sV,4)}, {so} offen offset:{128*j}{kv}")

    regs = [vS + i for i in range(8)]
    def kdot(n):
        k, g, j = loads[n]
        def f():
            if j == 0:
                a(f"v_mov_b32 v{vS + g % 8}, 0")
            for i in range(4):
                a(f"v_dot2c_f32_bf16 v{vS + g % 8}, v{slot(n)+i}, v{vQ+4*j+i}")
        return f
    def sm1():
        a("s_nop 2")
        for ctl in ("quad_perm:[1,0,3,2]", "quad_perm:[2,3,0,1]", "row_half_mirror"):
            for x in regs:
                a(f"v_add_f32_dpp v{x}, v{x}, v{x} {ctl} row_mask:0xf bank_mask:0xf")
    def sm2(c):
        def f():
            a(f"v_max3_f32 v{vU0}, v{vS}, v{vS+1}, v{vS+2}")
            a(f"v_max3_f32 v{vU1}, v{vS+3}, v{vS+4}, v{vS+5}")
            a(f"v_max3_f32 v{vU0}, v{vU0}, v{vS+6}, v{vS+7}")
            a(f"v_max_f32 v{vU0}, v{vU0}, v{vU1}")
            for ctl in ("row_ror:8 row_mask:0xf", "row_bcast:15 row_mask:0xa", "row_bcast:31 row_mask:0xc"):
                a("s_nop 1")
                a(f"v_max_f32_dpp v{vU0}, v{vU0}, v{vU0} {ctl} bank_mask:0xf")
            a(f"v_mul_f32 v{vU0}, s{s_c}, v{vU0}")
            if c:
                a(f"v_max_f32 v{vU0}, s{s_m}, v{vU0}")
            a(f"v_mov_b32 v{vU1}, s{s_c}")
            a(f"v_readlane_b32 s{s_mn}, v{vU0}, 63")
            if c:
                a(f"v_mov_b32 v{vSc}, s{s_m}")
                a("s_nop 0")
                a(f"v_subrev_f32 v{vSc}, s{s_mn}, v{vSc}")
                a(f"v_exp_f32 v{vSc}, v{vSc}")
            else:
                a("s_nop 1")
            a(f"s_mov_b32 s{s_m}, s{s_mn}")
        return f
    def sm3():
        for x in regs:
            a(f"v_fma_f32 v{x}, v{x}, v{vU1}, -s{s_mn}")
        for x in regs:
            a(f"v_exp_f32 v{x}, v{x}")
    def sm4(c):
        def f():
            a(f"v_add_f32 v{vU0}, v{vS}, v{vS+1}")
            a(f"v_add_f32 v{vU1}, v{vS+2}, v{vS+3}")
            a(f"v_add_f32 v{vU2}, v{vS+4}, v{vS+5}")
            a(f"v_add_f32 v{vU3}, v{vS+6}, v{vS+7}")
            a(f"v_add_f32 v{vU0}, v{vU0}, v{vU1}")
            a(f"v_add_f32 v{vU2}, v{vU2}, v{vU3}")
            if c:
                a(f"v_add_f32 v{vU0}, v{vU0}, v{vU2}")
                a(f"v_fma_f32 v{vL}, v{vL}, v{vSc}, v{vU0}")
                for i in range(12):
                    a(f"v_mul_f32 v{vAcc+i}, v{vAcc+i}, v{vSc}")
            else:
                a(f"v_add_f32 v{vL}, v{vU0}, v{vU2}")
            for x in regs:
                a(f"v_cvt_pk_bf16_f32 v{x}, v{x}, v{x}")
        return f
    def publish():
        for ctl in ("row_ror:8 row_mask:0xf", "row_bcast:15 row_mask:0xa", "row_bcast:31 row_mask:0xc"):
            a(f"v_add_f32_dpp v{vL}, v{vL}, v{vL} {ctl} bank_mask:0xf")
            a("s_nop 1")
        a(f"v_readlane_b32 s{s_l}, v{vL}, 63")
        a(f"v_mov_b32 v{vU1}, s{s_m}")
        a(f"s_lshl_b32 s{s_t0}, s{s_sw}, 3")
        a(f"v_mov_b32 v{vU0}, s{s_t0}")
        a(f"v_mov_b32 v{vU2}, s{s_l}")
        a(f"ds_write_b64 v{vU0}, v[{vU1}:{vU2}] offset:{L_ML}")
    def b3():
        a("s_waitcnt lgkmcnt(0)")
        a("s_barrier")
        stamp(a, o, 6)
    def vmul(n):
        k, g, j = loads[n]
        def f():
            if j == 0:
                for i in range(4):
                    a(f"v_and_b32 v{sB+i}, v{vMask+i}, v{vS + g % 8}")
                a("s_nop 1")
            cc = "0" if g == 0 else r(vAcc + 4 * j, 4)
            a(f"v_mfma_f32_16x16x32_bf16 {r(vAcc+4*j,4)}, {r(slot(n),4)}, {r(sB,4)}, {cc}")
        return f
    def qwait():
        a(f"v_lshlrev_b32 v{vT0}, 4, v{vC}")
        a(f"v_mov_b32 v{vT1}, 0")
        a(f"s_mov_b32 s{s_cnt}, 0")
        a("L_qwait:")
        a(f"ds_read_b32 v{vU0}, v{vT1} offset:{L_CNT + 4}")
        for j in range(3):
            a(f"ds_read_b128 {r(vQ+4*j,4)}, v{vT0} offset:{L_QBUF + 128*j}")
        a(f"s_add_u32 s{s_cnt}, s{s_cnt}, 1")
        a("s_waitcnt lgkmcnt(0)")
        a(f"v_readfirstlane_b32 s{s_t0}, v{vU0}")
        a(f"s_cmp_ge_u32 s{s_cnt}, 0x40000")
        a("s_cbranch_scc1 L_qok")
        a(f"s_cmp_eq_u32 s{s_t0}, 0")
        a("s_cbranch_scc1 L_qwait")
        a("L_qok:")
        stamp(a, o, 2)

    items = []
    for n, (k, g, j) in enumerate(loads):
        c = g // 8
        if k == "K":
            items.append((n, n, 1, kdot(n)))
            if g % 8 == 7 and j == 2:
                items += [(n, None, 9, sm1), (n, None, 9, sm2(c)), (n, None, 9, sm3), (n, None, 9, sm4(c))]
                if c == 3:
                    items.append((n, None, 9, publish))
        else:
            items.append((n, n, 1, vmul(n)))
            if c == 3 and g % 8 == o.b3g and j == 2:
                items.append((n, None, 1, b3))
            if o.stamps and g == 7 and j == 2:
                items.append((n, None, 0, lambda: stamp(a, o, 4)))
    pos = 0
    def run(limit, budget):
        nonlocal pos
        spent = 0
        while pos < len(items) and items[pos][0] <= limit and (spent == 0 or spent + items[pos][2] <= budget):
            spent += max(items[pos][2], 1)
            items[pos][3]()
            pos += 1
    def force(n):
        nonlocal pos
        last = max(i for i, it in enumerate(items) if it[1] == n)
        while pos <= last:
            items[pos][3]()
            pos += 1

    R = 3 * SR
    def setup():
        a(f"s_add_u32 s8, s8, s{s_t0}")
        a("s_addc_u32 s9, s9, 0")
        make_srd(a, sV, 8, 393216)
        if not o.kafter:
            a("s_barrier")
        common_srds(a, o)
        lane_consts(a, s_sw, L_OP)
        a(f"s_mov_b32 s{s_c}, {hex(f32bits(math.log2(math.e) / math.sqrt(192.0)))}")
        if o.kafter:
            a("s_barrier")
    if o.kafter:
        setup()
    for n in range(len(loads)):
        if n == R:
            qwait()
            a(f"s_waitcnt vmcnt({min(W, o.win0)-1})")
        if n >= R:
            force(n - R)
        issue(n)
        if n == o.win0 - 1:
            stamp(a, o, 1)
            if not o.kafter:
                setup()
        if n >= R + W - 1:
            run(n - W, 1000 if n == R + W - 1 else o.budget)
    stamp(a, o, 5)
    N = len(loads)
    for k in range(W - 1, -1, -1):
        a(f"s_waitcnt vmcnt({k})")
        run(N - 1 - k, 1000)
    assert pos == len(items)
    a("s_nop 6")
    write_partials(a)
    a("s_waitcnt lgkmcnt(0)")
    a("s_barrier")
    stamp(a, o, 7)
    if o.prio:
        a("s_setprio 0")
    a("s_branch L_tail")

def aux(a, o):
    single = o.mode == "single"
    a.c("partial q over wq rows 160 split + 16 a + 2 kappa + t")
    a(f"v_lshlrev_b32 v{vT0}, 2, v{vKap}")
    a(f"v_mul_u32_u24 v{vA}, 24576, v{vKap}")
    a(f"v_lshl_add_u32 v{vA}, v{vC}, 4, v{vA}")
    a(f"s_mul_i32 s{s_t2}, s{s_hd}, 384")
    a(f"s_mul_i32 s{s_t1}, s{s_sp}, 10")
    a(f"s_add_u32 s{s_t1}, s{s_t1}, s{s_a}")
    a(f"s_mul_i32 s{s_base}, s{s_t1}, {16 * 12288}")
    a(f"s_lshl_b32 s{s_t1}, s{s_t1}, 5")
    a(f"s_add_u32 s{s_off}, s{s_base}, 12288")
    a("s_waitcnt lgkmcnt(0)")
    stamp(a, o, 0)
    a(f"s_cmp_eq_u32 s{s_br}, 0")
    a("s_cselect_b64 s[10:11], s[10:11], s[20:21]")
    a("s_cselect_b64 s[4:5], s[4:5], s[14:15]")
    a("s_cselect_b64 s[12:13], s[12:13], s[22:23]")
    a(f"s_add_u32 s{sWQ}, s10, s{s_t2}")
    a("s_addc_u32 s11, s11, 0")
    a(f"s_sub_u32 s{sWQ+2}, {640 * 12288}, s{s_t2}")
    a(f"s_and_b32 s{sWQ+1}, s11, 0xffff")
    a(f"s_mov_b32 s{sWQ+3}, 0x20000")
    make_srd(a, sX, 4, 1280)
    for n in range(6):
        t, j = divmod(n, 3)
        a(f"buffer_load_dwordx4 {r(ARING+4*n,4)}, v{vA}, {sr(sWQ,4)}, s{s_off if t else s_base} offen offset:{128*j}{o.qfl}")
        if n == 0:
            a(f"buffer_load_dword v{vX}, v{vT0}, {sr(sX,4)}, s{s_t1} offen")
    if o.kafter < 2:
        a("s_barrier")
    stamp(a, o, 1)
    common_srds(a, o)
    lane_consts(a, s_a, L_QP)
    a(f"s_mov_b32 s{s_sel0}, 0x01000100")
    a(f"s_mov_b32 s{s_sel1}, 0x03020302")
    a(f"s_mul_i32 s{s_t0}, s{s_hd}, 245760")
    a(f"s_add_u32 s12, s12, s{s_t0}")
    a("s_addc_u32 s13, s13, 0")
    make_srd(a, sWO, 12, 245760)
    for t in range(2):
        a(f"s_waitcnt vmcnt({3 - 3 * t})")
        if t == 0:
            if o.kafter == 2:
                a("s_barrier")
            stamp(a, o, 2)
        a(f"v_perm_b32 v{vT0}, v{vX}, v{vX}, s{s_sel0 + t}")
        for i in range(4):
            a(f"v_and_b32 v{aB+i}, v{vMask+i}, v{vT0}")
        a("s_nop 1")
        for j in range(3):
            cc = "0" if t == 0 else r(vAcc + 4 * j, 4)
            a(f"v_mfma_f32_16x16x32_bf16 {r(vAcc+4*j,4)}, {r(ARING+12*t+4*j,4)}, {r(aB,4)}, {cc}")
    a.c("wo lane offset: row 16 (G&1) + (G>>1), columns 8 n; wave block: rows 96 rh, columns 128 cb")
    a(f"v_bfe_u32 v{vT0}, v0, 4, 1")
    a(f"v_bfe_u32 v{vT1}, v0, 5, 1")
    a(f"v_lshl_add_u32 v{vT0}, v{vT0}, 4, v{vT1}")
    a(f"v_mul_u32_u24 v{vA}, 1280, v{vT0}")
    a(f"v_and_b32 v{vT1}, 15, v0")
    a(f"v_lshl_add_u32 v{vA}, v{vT1}, 4, v{vA}")
    a(f"s_and_b32 s{s_t0}, s{s_a}, 1")
    a(f"s_lshr_b32 s{s_t1}, s{s_a}, 1")
    a(f"s_mul_i32 s{s_base}, s{s_t0}, {96 * 1280}")
    a(f"s_lshl_b32 s{s_t2}, s{s_t1}, 8")
    a(f"s_add_u32 s{s_base}, s{s_base}, s{s_t2}")
    write_partials(a)
    a(f"v_mov_b32 v{vX}, 0")
    a(f"v_mov_b32 v{vX+1}, 1")
    a("s_mov_b64 exec, 1")
    a(f"ds_add_u32 v{vX}, v{vX+1} offset:{L_CNT}")
    a("s_mov_b64 exec, -1")
    a.c("y store offset and o partial read address; row pair p of a 32-row block sits in slot (p - split) & 3")
    a(f"s_mul_i32 s{s_yo}, s{s_row}, {YROW}")
    a(f"s_mul_i32 s{s_off}, s{s_t0}, 1280")
    a(f"s_add_u32 s{s_yo}, s{s_yo}, s{s_off}")
    a(f"s_add_u32 s{s_yo}, s{s_yo}, s{s_t2}")
    a(f"v_bfe_u32 v{vT0}, v0, 4, 2")
    a(f"v_lshlrev_b32 v{vKap}, 4, v{vT1}")
    if o.prot:
        a(f"v_add_u32 v{vC}, s{s_sp}, v{vT1}")
        a(f"v_bfi_b32 v{vT1}, 3, v{vC}, v{vT1}")
    a(f"v_lshl_add_u32 v{vT0}, v{vT1}, 2, v{vT0}")
    a(f"s_mul_i32 s{s_t0}, s{s_t0}, 384")
    a(f"v_lshl_add_u32 v{vC}, v{vT0}, 3, s{s_t0}")
    stamp(a, o, 3)
    a.c("======== wo block of this wave, transposed in registers to the B operand layout")
    a(f"s_mov_b32 s{s_sel0}, 0x05040100")
    a(f"s_mov_b32 s{s_sel1}, 0x07060302")
    Wo = o.wo
    def transpose(t):
        b = ARING + 32 * t
        for p in range(4):
            x0, x1 = b + 8 * p + p, b + 8 * p + 4 + p
            a(f"v_perm_b32 v{vX}, v{x1}, v{x0}, s{s_sel0}")
            a(f"v_perm_b32 v{x1}, v{x1}, v{x0}, s{s_sel1}")
            a(f"v_mov_b32 v{x0}, v{vX}")
            for u in range(p + 1, 4):
                a1, b1, a2, b2 = b + 8 * p + u, b + 8 * p + 4 + u, b + 8 * u + p, b + 8 * u + 4 + p
                a(f"v_perm_b32 v{vX}, v{b1}, v{a1}, s{s_sel0}")
                a(f"v_perm_b32 v{vX+1}, v{b1}, v{a1}, s{s_sel1}")
                a(f"v_perm_b32 v{a1}, v{b2}, v{a2}, s{s_sel0}")
                a(f"v_perm_b32 v{b1}, v{b2}, v{a2}, s{s_sel1}")
                a(f"v_mov_b32 v{a2}, v{vX}")
                a(f"v_mov_b32 v{b2}, v{vX+1}")
    n = 0
    for p in range(4):
        if o.prot:
            a(f"s_add_u32 s{s_t0}, s{s_sp}, {p}")
            a(f"s_and_b32 s{s_t0}, s{s_t0}, 3")
            a(f"s_mul_i32 s{s_t0}, s{s_t0}, 2560")
            a(f"s_add_u32 s{s_t0}, s{s_t0}, s{s_base}")
        else:
            a(f"s_add_u32 s{s_t0}, s{s_base}, {2560 * p}")
        for t in range(3):
            for h in range(2):
                w = o.wo0 if n < 6 else Wo
                if n >= w:
                    a(f"s_waitcnt vmcnt({w-1})")
                a(f"s_add_u32 s{s_off}, s{s_t0}, {(32 * t + 8 * h) * 1280}")
                a(f"buffer_load_dwordx4 {r(ARING+32*t+8*p+4*h,4)}, v{vA}, {sr(sWO,4)}, s{s_off} offen")
                n += 1
    for t in range(3):
        a(f"s_waitcnt vmcnt({4 - 2 * t})")
        transpose(t)
    stamp(a, o, 4)
    a(f"v_and_b32 v{vT0}, 3, v0")
    a(f"v_lshlrev_b32 v{vT0}, 3, v{vT0}")
    a("s_barrier")
    stamp(a, o, 6)
    read_ml(a)
    for i in range(4):
        a(f"v_readlane_b32 s{s_f+i}, v8, {i}")
    a("s_mov_b32 exec_lo, 0x0fff0fff")
    a("s_mov_b32 exec_hi, 0x0fff0fff")
    a("s_barrier")
    stamp(a, o, 7)
    a.c("======== o = sum of the stream waves' partials; y = o @ wo")
    for k in range(8):
        a(f"ds_read_b64 v[{16+2*k}:{17+2*k}], v{vC} offset:{L_OP + 768*k}")
    a("s_mov_b64 exec, -1")
    for w in range(4):
        a(f"s_waitcnt lgkmcnt({6 - 2 * w})")
        a(f"v_add_f32 v{16+4*w}, v{16+4*w}, v{18+4*w}")
        a(f"v_add_f32 v{17+4*w}, v{17+4*w}, v{19+4*w}")
        if w == 0:
            a(f"v_mul_f32 v{vT0}, s{s_f}, v16")
            a(f"v_mul_f32 v{vT1}, s{s_f}, v17")
        else:
            a(f"v_fmac_f32 v{vT0}, s{s_f+w}, v{16+4*w}")
            a(f"v_fmac_f32 v{vT1}, s{s_f+w}, v{17+4*w}")
    a(f"v_cvt_pk_bf16_f32 v{vT0}, v{vT0}, v{vT1}")
    a("s_nop 1")
    def bc(j):
        a(f"v_mov_b32_dpp v{vAcc+j}, v{vT0} row_newbcast:{j} row_mask:0xf bank_mask:0xf")
    for j in range(6):
        bc(j)
    acc = [8, 12] + [ARING + 4 * e for e in range(6)]
    nb = 6
    for t in range(3):
        for e in range(8):
            cc = "0" if t == 0 else r(acc[e], 4)
            a(f"v_mfma_f32_16x16x32_bf16 {r(acc[e],4)}, {r(vAcc+4*t,4)}, {r(ARING+32*t+4*e,4)}, {cc}")
            if nb < 12:
                bc(nb)
                nb += 1
    a("s_nop 2")
    a(f"v_cvt_pk_bf16_f32 v{aB}, v{acc[0]}, v{acc[1]}")
    a(f"v_cvt_pk_bf16_f32 v{aB+1}, v{acc[2]}, v{acc[3]}")
    a("s_mov_b64 exec, 0xffff")
    a(f"v_cvt_pk_bf16_f32 v{aB+2}, v{acc[4]}, v{acc[5]}")
    if single:
        a(f"v_min_u32 v{aB}, -2, v{aB}")
        a(f"v_cvt_pk_bf16_f32 v{aB+3}, v{acc[6]}, v{acc[7]}")
        for i in range(1, 4):
            a(f"v_min_u32 v{aB+i}, -2, v{aB+i}")
    else:
        a("s_nop 0")
        a(f"v_cvt_pk_bf16_f32 v{aB+3}, v{acc[6]}, v{acc[7]}")
    a(f"buffer_store_dwordx4 {r(aB,4)}, v{vKap}, {sr(sWS,4)}, s{s_yo} offen" + (" sc1" if single else ""))
    a("s_mov_b64 exec, -1")
    stamp(a, o, 8)
    a("s_branch L_tail")

def lds_spin(a, label, off, cmp, val):
    a(f"s_mov_b32 s{s_cnt}, 0")
    a(f"{label}:")
    a(f"ds_read_b32 v10, v8 offset:{off}")
    a(f"s_add_u32 s{s_cnt}, s{s_cnt}, 1")
    a("s_waitcnt lgkmcnt(0)")
    a(f"v_readfirstlane_b32 s{s_t0}, v10")
    a(f"s_cmp_ge_u32 s{s_cnt}, 0x40000")
    a(f"s_cbranch_scc1 {label}_done")
    a(f"s_cmp_{cmp}_u32 s{s_t0}, {val}")
    a(f"s_cbranch_scc0 {label}")
    a(f"{label}_done:")

def helper(a, o):
    single = o.mode == "single"
    wH, wG = o.order.index("H"), o.order.index("G")
    OLD, NEW = 112, 16
    a("L_help:")
    a(f"s_cmp_eq_u32 s{s_w}, {wG}")
    a("s_cbranch_scc1 L_hG")
    a.c("partial q hand-off: bit 0 of every word is the inverse of the bit found there on entry")
    a(f"v_and_b32 v{vT0}, 63, v0")
    a(f"v_lshlrev_b32 v{vT1}, 4, v{vT0}")
    for i in range(4):
        a(f"v_mov_b32 v{8+i}, 0")
    a(f"ds_write_b128 v8, v[8:11] offset:{L_CNT}")
    a(f"s_and_b32 s{s_t2}, s{s_row}, -4")
    for i in range(4):
        a(f"s_add_u32 s{s_t0}, s{s_sp}, {i}")
        a(f"s_and_b32 s{s_t0}, s{s_t0}, 3")
        a(f"s_add_u32 s{s_t0}, s{s_t0}, s{s_t2}")
        a(f"s_mul_i32 s{s_t0}, s{s_t0}, 768")
        a(f"s_add_u32 s{s_f+i}, s{s_t0}, {W_Q}")
    a("s_waitcnt lgkmcnt(0)")
    stamp(a, o, 0)
    common_srds(a, o)
    a("s_mov_b32 exec_hi, 0xffff")
    for i in range(4):
        a(f"buffer_load_dwordx4 {r(OLD+4*i,4)}, v{vT1}, {sr(sWS,4)}, s{s_f+i} offen sc1")
    a("s_barrier")
    a(f"v_lshrrev_b32 v10, 3, v{vT0}")
    a(f"v_and_b32 v{vT0}, 7, v{vT0}")
    a(f"v_lshlrev_b32 v{vT0}, 1, v{vT0}")
    a(f"v_lshl_add_u32 v{vT0}, v10, 6, v{vT0}")
    a("v_mov_b32 v9, 1")
    a(f"s_lshl_b32 s{s_t1}, s{s_row}, 3")
    a(f"s_add_u32 s{s_t1}, s{s_t1}, {W_ML}")
    a("s_waitcnt vmcnt(0)")
    stamp(a, o, 1)
    for i in range(16):
        a(f"v_not_b32 v{OLD+i}, v{OLD+i}")
    lds_spin(a, "L_parts", L_CNT, "eq", 10)
    stamp(a, o, 2)
    for i in range(20):
        a(f"ds_read_b128 {r(ARING+4*i,4)}, v{vT1} offset:{L_QP + 768*i}")
    for i in range(10):
        a(f"s_waitcnt lgkmcnt({min(18 - 2 * i, 15)})")
        for h in range(4):
            a(f"v_add_f32 v{ARING+8*i+h}, v{ARING+8*i+h}, v{ARING+8*i+4+h}")
        if i % 2 == 1:
            for h in range(4):
                a(f"v_add_f32 v{ARING+8*(i-1)+h}, v{ARING+8*(i-1)+h}, v{ARING+8*i+h}")
        if i in (3, 7):
            for h in range(4):
                a(f"v_add_f32 v{ARING+8*(i-3)+h}, v{ARING+8*(i-3)+h}, v{ARING+8*(i-1)+h}")
    for h in range(4):
        a(f"v_add_f32 v{ARING+32+h}, v{ARING+32+h}, v{ARING+64+h}")
    for h in range(4):
        a(f"v_add_f32 v{ARING+h}, v{ARING+h}, v{ARING+32+h}")
    for h in range(4):
        a(f"v_bfi_b32 v{NEW+h}, 1, v{OLD+h}, v{ARING+h}")
    a(f"buffer_store_dwordx4 {r(NEW,4)}, v{vT1}, {sr(sWS,4)}, s{s_f} offen sc1")
    if o.ackwait:
        a("s_waitcnt vmcnt(0)")
    stamp(a, o, 3)
    a(f"s_mov_b32 s{s_cnt}, 0")
    a(f"s_mov_b32 s{s_m}, 0")
    a("L_qpoll:")
    for i in range(1, 4):
        a(f"buffer_load_dwordx4 {r(NEW+4*i,4)}, v{vT1}, {sr(sWS,4)}, s{s_f+i} offen sc1")
    a(f"s_cmp_lt_u32 s{s_cnt}, 2")
    a("s_cbranch_scc1 L_qp1")
    a(f"buffer_load_dword v11, v8, {sr(sDBG,4)}, s{s_t2} offen sc1")
    a("L_qp1:")
    a("s_waitcnt vmcnt(0)")
    a(f"ds_write_b32 v8, v9 offset:{L_CNT + 8}")
    for i in range(12):
        a(f"v_xor_b32 v{ARING+4+i}, v{NEW+4+i}, v{OLD+4+i}")
    for i in range(4):
        a(f"v_or3_b32 v{ARING+4+i}, v{ARING+4+i}, v{ARING+8+i}, v{ARING+12+i}")
    a(f"v_or3_b32 v{ARING+4}, v{ARING+4}, v{ARING+5}, v{ARING+6}")
    a(f"v_and_or_b32 v{ARING+4}, v{ARING+7}, 1, v{ARING+4}")
    a(f"v_and_b32 v{ARING+4}, 1, v{ARING+4}")
    a(f"v_cmp_ne_u32 vcc, 0, v{ARING+4}")
    a(f"v_readfirstlane_b32 s{s_t0}, v11")
    a(f"s_add_u32 s{s_cnt}, s{s_cnt}, 1")
    a("s_cbranch_vccz L_qpoll_done")
    a.c("a word already rewritten before its first look never flips: accept a read made after all 4 stores were counted")
    a(f"s_cmp_lg_u32 s{s_m}, 0")
    a("s_cbranch_scc1 L_qpoll_done")
    a(f"s_cmp_eq_u32 s{s_t0}, 4")
    a(f"s_cselect_b32 s{s_m}, 1, 0")
    a(f"s_cmp_lt_u32 s{s_cnt}, 0x8000")
    a("s_cbranch_scc1 L_qpoll")
    a("L_qpoll_done:")
    for h in range(4):
        a(f"v_add_f32 v{NEW+h}, v{NEW+h}, v{NEW+4+h}")
        a(f"v_add_f32 v{NEW+8+h}, v{NEW+8+h}, v{NEW+12+h}")
    for h in range(4):
        a(f"v_add_f32 v{NEW+h}, v{NEW+h}, v{NEW+8+h}")
    a(f"v_cvt_pk_bf16_f32 v{NEW}, v{NEW}, v{NEW+1}")
    a(f"v_cvt_pk_bf16_f32 v{NEW+2}, v{NEW+2}, v{NEW+3}")
    a(f"ds_write_b16 v{vT0}, v{NEW} offset:{L_QBUF}")
    a(f"ds_write_b16_d16_hi v{vT0}, v{NEW} offset:{L_QBUF + 16}")
    a(f"ds_write_b16 v{vT0}, v{NEW+2} offset:{L_QBUF + 32}")
    a(f"ds_write_b16_d16_hi v{vT0}, v{NEW+2} offset:{L_QBUF + 48}")
    a(f"ds_write_b32 v8, v9 offset:{L_CNT + 4}")
    a("s_mov_b64 exec, -1")
    stamp(a, o, 4)
    if o.stamps:
        a(f"v_writelane_b32 v{vST}, s{s_cnt}, 12")
    a(f"v_and_b32 v{vT0}, 3, v0")
    a(f"v_lshlrev_b32 v{vT0}, 3, v{vT0}")
    a("s_waitcnt lgkmcnt(0)")
    a("s_barrier")
    a.c("publish (max, sum) of this key split")
    read_ml(a)
    a("v_mul_f32 v11, v8, v9")
    a("s_nop 1")
    a("v_add_f32_dpp v11, v11, v11 quad_perm:[1,0,3,2] row_mask:0xf bank_mask:0xf")
    a("s_nop 1")
    a("v_add_f32_dpp v11, v11, v11 quad_perm:[2,3,0,1] row_mask:0xf bank_mask:0xf")
    a("s_mov_b64 exec, 1")
    if single:
        a("v_min_u32 v10, -2, v10")
        a("v_min_u32 v11, -2, v11")
    a(f"buffer_store_dwordx2 v[10:11], v{vT0}, {sr(sWS,4)}, s{s_t1} offen" + (" sc1" if single else ""))
    a("s_mov_b64 exec, -1")
    a("s_branch L_h5")
    a("L_hG:")
    a(f"v_and_b32 v{vT0}, 63, v0")
    a(f"v_lshlrev_b32 v{vT1}, 2, v{vT0}")
    a(f"v_lshlrev_b32 v{vT0}, 4, v{vT0}")
    a("v_mov_b32 v8, 0")
    a("v_mov_b32 v9, 1")
    a(f"s_and_b32 s{s_t2}, s{s_row}, -4")
    a("s_waitcnt lgkmcnt(0)")
    stamp(a, o, 0)
    common_srds(a, o)
    a("s_barrier")
    if single:
        a.c("mark this workgroup's final hand-off words as not yet written")
        for i in range(4):
            a(f"v_mov_b32 v{16+i}, -1")
        a(f"s_mul_i32 s{s_t0}, s{s_row}, {YROW}")
        a(f"s_lshl_b32 s{s_t1}, s{s_row}, 3")
        a(f"s_add_u32 s{s_t1}, s{s_t1}, {W_ML}")
        a(f"buffer_store_dwordx4 v[16:19], v{vT0}, {sr(sWS,4)}, s{s_t0} offen sc1")
        a(f"buffer_store_dwordx4 v[16:19], v{vT0}, {sr(sWS,4)}, s{s_t0} offen offset:1024 sc1")
        a("s_mov_b64 exec, 0xffffffff")
        a(f"buffer_store_dwordx4 v[16:19], v{vT0}, {sr(sWS,4)}, s{s_t0} offen offset:2048 sc1")
        a("s_mov_b64 exec, 1")
        a(f"buffer_store_dwordx2 v[16:17], v{vT0}, {sr(sWS,4)}, s{s_t1} offen sc1")
    a("s_mov_b64 exec, 1")
    lds_spin(a, "L_ack", L_CNT + 8, "lg", 0)
    a.c("count the workgroup: partial q stored, final hand-off words cleared")
    a("s_waitcnt vmcnt(0)")
    a(f"buffer_atomic_add v9, v8, {sr(sDBG,4)}, s{s_t2} offen sc1")
    a("s_mov_b64 exec, -1")
    stamp(a, o, 3)
    a("s_barrier")
    if single:
        a.c("reducer workgroups must not look at hand-off words before every workgroup has cleared its own")
        a("s_cmp_ge_u32 s2, 40")
        a("s_cbranch_scc1 L_h5")
        a(f"s_mov_b32 s{s_cnt}, 0")
        a("L_chk:")
        a(f"buffer_load_dword v10, v{vT1}, {sr(sDBG,4)}, 0 offen sc1")
        a(f"s_add_u32 s{s_cnt}, s{s_cnt}, 1")
        a("s_waitcnt vmcnt(0)")
        a("v_cmp_ne_u32 vcc, 4, v10")
        a(f"s_cmp_ge_u32 s{s_cnt}, 0x8000")
        a("s_cbranch_scc1 L_h5")
        a("s_cbranch_vccnz L_chk")
    a("L_h5:")
    a("s_barrier")
    stamp(a, o, 7)

def consumer(a, o, poll, endl):
    a.c("---- final reduction: 128 partial rows x 2 halves of one branch, 32 columns")
    a("s_cmp_ge_u32 s2, 20")
    a(f"s_cselect_b32 s{s_t0}, 1, 0")
    a(f"s_mul_i32 s{s_t1}, s{s_t0}, 20")
    a(f"s_sub_u32 s{s_t1}, s2, s{s_t1}")
    a(f"s_mul_i32 s{s_t2}, s{s_t0}, {128 * YROW}")
    a(f"s_lshl_b32 s{s_off}, s{s_t1}, 6")
    a(f"s_add_u32 s{s_t2}, s{s_t2}, s{s_off}")
    a(f"s_lshl_b32 s{s_off}, s{s_t0}, 10")
    a(f"s_add_u32 s{s_off}, s{s_off}, {W_ML}")
    a("v_lshrrev_b32 v32, 3, v0")
    a("v_lshlrev_b32 v33, 3, v32")
    fl = " sc1" if poll else ""
    a(f"buffer_load_dwordx2 v[36:37], v33, {sr(sWS,4)}, s{s_off} offen{fl}")
    a("v_bfe_u32 v34, v0, 2, 1")
    a(f"v_mul_u32_u24 v32, {YROW}, v32")
    a("v_mul_u32_u24 v34, 1280, v34")
    a("v_and_b32 v35, 3, v0")
    a("v_lshlrev_b32 v35, 4, v35")
    a("v_add3_u32 v32, v32, v34, v35")
    a(f"buffer_load_dwordx4 v[40:43], v32, {sr(sWS,4)}, s{s_t2} offen{fl}")
    a("s_waitcnt vmcnt(1)")
    if poll:
        a(f"s_mov_b32 s{s_cnt}, 0")
        a("L_pollm:")
        a("v_max_u32 v38, v36, v37")
        a("v_cmp_eq_u32 vcc, -1, v38")
        a(f"s_add_u32 s{s_cnt}, s{s_cnt}, 1")
        a("s_cbranch_vccz L_pollm_done")
        a(f"s_cmp_ge_u32 s{s_cnt}, 0x8000")
        a("s_cbranch_scc1 L_pollm_done")
        a("s_mov_b64 exec, vcc")
        a(f"buffer_load_dwordx2 v[36:37], v33, {sr(sWS,4)}, s{s_off} offen sc1")
        a("s_mov_b64 exec, -1")
        a("s_waitcnt vmcnt(0)")
        a("s_branch L_pollm")
        a("L_pollm_done:")
    a.c("softmax weight of this row among the 4 splits of its head (lanes xor 8, xor 16)")
    a("v_max_f32_dpp v38, v36, v36 row_ror:8 row_mask:0xf bank_mask:0xf")
    a("s_nop 0")
    a("v_mov_b32 v39, v38")
    a("s_nop 1")
    a("v_permlane16_swap_b32 v38, v39")
    a("v_max_f32 v38, v38, v39")
    a("v_sub_f32 v36, v36, v38")
    a("v_exp_f32 v36, v36")
    a("s_nop 0")
    a("v_mul_f32 v37, v37, v36")
    a("s_nop 1")
    a("v_add_f32_dpp v37, v37, v37 row_ror:8 row_mask:0xf bank_mask:0xf")
    a("s_nop 0")
    a("v_mov_b32 v39, v37")
    a("s_nop 1")
    a("v_permlane16_swap_b32 v37, v39")
    a("v_add_f32 v37, v37, v39")
    a("v_rcp_f32 v37, v37")
    a.c("LDS position: column 8 (lane&3) + 4 bit5 + 2 bit4 + bit3 in the slot of this wave")
    a("v_bfe_u32 v34, v0, 5, 1")
    a("v_mul_f32 v36, v36, v37")
    a("v_lshl_add_u32 v35, v35, 1, 0")
    a("v_lshl_add_u32 v35, v34, 4, v35")
    a("v_bfe_u32 v34, v0, 4, 1")
    a("v_lshl_add_u32 v35, v34, 3, v35")
    a("v_bfe_u32 v34, v0, 3, 1")
    a("v_lshl_add_u32 v35, v34, 2, v35")
    a("v_lshrrev_b32 v34, 6, v0")
    a("v_lshl_add_u32 v35, v34, 7, v35")
    a(f"s_mov_b32 s{s_ex}, 0x0f0f0f0f")
    a(f"s_mov_b32 s{s_ex+1}, 0x0f0f0f0f")
    a(f"s_mov_b32 s{s_sel0}, 0xffff0000")
    a("s_waitcnt vmcnt(0)")
    if poll:
        a(f"s_mov_b32 s{s_cnt}, 0")
        a("L_polly:")
        a("v_max3_u32 v38, v40, v41, v42")
        a("v_max_u32 v38, v38, v43")
        a("v_cmp_eq_u32 vcc, -1, v38")
        a(f"s_add_u32 s{s_cnt}, s{s_cnt}, 1")
        a("s_cbranch_vccz L_polly_done")
        a(f"s_cmp_ge_u32 s{s_cnt}, 0x8000")
        a("s_cbranch_scc1 L_polly_done")
        a("s_mov_b64 exec, vcc")
        a(f"buffer_load_dwordx4 v[40:43], v32, {sr(sWS,4)}, s{s_t2} offen sc1")
        a("s_mov_b64 exec, -1")
        a("s_waitcnt vmcnt(0)")
        a("s_branch L_polly")
        a("L_polly_done:")
    stamp(a, o, 9)
    for u in range(4):
        a(f"v_lshlrev_b32 v{44+2*u}, 16, v{40+u}")
        a(f"v_and_b32 v{45+2*u}, s{s_sel0}, v{40+u}")
    for e in range(8):
        a(f"v_mul_f32 v{44+e}, v{44+e}, v36")
    for e in range(4):
        a(f"v_permlane32_swap_b32 v{44+e}, v{48+e}")
    for e in range(4):
        a(f"v_add_f32 v{44+e}, v{44+e}, v{48+e}")
    a("s_nop 0")
    a("v_permlane16_swap_b32 v44, v46")
    a("v_permlane16_swap_b32 v45, v47")
    a("v_add_f32 v44, v44, v46")
    a("v_add_f32 v45, v45, v47")
    a("s_nop 0")
    a("v_add_f32_dpp v44, v44, v44 row_ror:8 row_mask:0xf bank_mask:0x3")
    a("v_add_f32_dpp v44, v45, v45 row_ror:8 row_mask:0xf bank_mask:0xc")
    a("s_nop 1")
    a("v_add_f32_dpp v44, v44, v44 row_shl:4 row_mask:0xf bank_mask:0x5")
    a(f"s_mov_b64 exec, {sr(s_ex,2)}")
    a(f"ds_write_b32 v35, v44 offset:{L_FIN}")
    a("s_mov_b64 exec, -1")
    a("v_and_b32 v32, 31, v0")
    a("v_lshrrev_b32 v33, 5, v0")
    a("v_lshlrev_b32 v34, 2, v32")
    a("v_lshl_add_u32 v34, v33, 10, v34")
    a("v_lshlrev_b32 v32, 1, v32")
    a(f"s_mul_i32 s{s_t0}, s{s_t0}, 1280")
    a(f"s_lshl_b32 s{s_t1}, s{s_t1}, 6")
    a(f"s_add_u32 s{s_t0}, s{s_t0}, s{s_t1}")
    a("s_waitcnt lgkmcnt(0)")
    a("s_barrier")
    a(f"s_cmp_lg_u32 s{s_w}, 0")
    a(f"s_cbranch_scc1 {endl}")
    a.c("wave 0: lane = column + 32 * half; each lane sums 8 wave slots")
    for i in range(8):
        a(f"ds_read_b32 v{40+i}, v34 offset:{L_FIN + 128 * i}")
    for i in range(4):
        a(f"s_waitcnt lgkmcnt({6 - 2 * i})")
        a(f"v_add_f32 v{40+2*i}, v{40+2*i}, v{41+2*i}")
    a("v_add_f32 v40, v40, v42")
    a("v_add_f32 v44, v44, v46")
    a("v_add_f32 v40, v40, v44")
    a("v_mov_b32 v41, v40")
    a("s_nop 1")
    a("v_permlane32_swap_b32 v40, v41")
    a("v_add_f32 v40, v40, v41")
    a("v_cvt_pk_bf16_f32 v40, v40, v40")
    a("s_mov_b64 exec, 0xffffffff")
    a(f"buffer_store_short v40, v32, {sr(sOUT,4)}, s{s_t0} offen")

def main_kernel(a, o):
    a.c(f"wave roles: {o.order}  (S stream K/V, A q and output projection, H/G hand-off bookkeeping)")
    a("s_cmp_ge_u32 s2, 256")
    a("s_cbranch_scc1 L_end")
    a("s_load_dwordx16 s[4:19], s[0:1], 0")
    a("s_load_dwordx8 s[20:27], s[0:1], 64")
    a("s_load_dwordx2 s[28:29], s[0:1], 96")
    a(f"v_lshrrev_b32 v{vT0}, 6, v0")
    a(f"v_and_b32 v{vC}, 7, v0")
    a(f"v_readfirstlane_b32 s{s_w}, v{vT0}")
    a(f"v_bfe_u32 v{vT1}, v0, 4, 2")
    a(f"v_bfe_u32 v{vT0}, v0, 3, 1")
    a(f"v_lshl_add_u32 v{vKap}, v{vT0}, 2, v{vT1}")
    if o.stamps:
        a(f"v_mov_b32 v{vST}, 0")
    a(f"s_lshr_b32 s{s_br}, s2, 7")
    a(f"s_and_b32 s{s_t0}, s2, 7")
    a(f"s_bfe_u32 s{s_t1}, s2, 0x20005")
    if o.hmap == 0:
        a.c("work split: branch = wg>>7, head = (wg&7) | ((wg>>5)&3)<<3, key split = (wg>>3)&3")
        a(f"s_lshl_b32 s{s_t1}, s{s_t1}, 3")
        a(f"s_or_b32 s{s_hd}, s{s_t0}, s{s_t1}")
    else:
        a.c("work split: branch = wg>>7, head = 4 ((wg + shift * branch) & 7) + ((wg>>5)&3), key split = (wg>>3)&3")
        if o.hmap > 1:
            a(f"s_mul_i32 s{s_t2}, s{s_br}, {o.hmap - 1}")
            a(f"s_add_u32 s{s_t0}, s{s_t0}, s{s_t2}")
            a(f"s_and_b32 s{s_t0}, s{s_t0}, 7")
        a(f"s_lshl_b32 s{s_t0}, s{s_t0}, 2")
        a(f"s_or_b32 s{s_hd}, s{s_t0}, s{s_t1}")
    a(f"s_bfe_u32 s{s_sp}, s2, 0x20003")
    a(f"s_lshl_b32 s{s_row}, s{s_br}, 5")
    a(f"s_add_u32 s{s_row}, s{s_row}, s{s_hd}")
    a(f"s_lshl_b32 s{s_row}, s{s_row}, 2")
    a(f"s_add_u32 s{s_row}, s{s_row}, s{s_sp}")
    a(f"s_sub_u32 s{s_sw}, s{s_w}, {o.order.index('S')}")
    a(f"s_sub_u32 s{s_a}, s{s_w}, {o.order.index('A')}")
    a(f"s_cmp_lt_u32 s{s_sw}, 4")
    a("s_cbranch_scc1 L_stream")
    a(f"s_cmp_ge_u32 s{s_a}, 10")
    a("s_cbranch_scc1 L_help")
    aux(a, o)
    stream(a, o)
    helper(a, o)
    a("L_tail:")
    if o.mode == "single":
        a("s_cmp_ge_u32 s2, 40")
        a("s_cbranch_scc1 L_fin")
        consumer(a, o, True, "L_fin")
        a("L_fin:")
    if o.stamps:
        stamp(a, o, 10)
        a.c("diagnostic: 16 time stamps per wave to ws + 1 MiB")
        a(f"s_getreg_b32 s{s_t0}, hwreg(HW_REG_HW_ID)")
        a(f"s_getreg_b32 s{s_t1}, hwreg(HW_REG_XCC_ID)")
        a(f"v_writelane_b32 v{vST}, s{s_t0}, 13")
        a(f"v_writelane_b32 v{vST}, s{s_t1}, 14")
        a("s_mov_b64 exec, 0xffff")
        a(f"s_lshl_b32 s{s_t0}, s2, 10")
        a(f"s_lshl_b32 s{s_t1}, s{s_w}, 6")
        a(f"s_add_u32 s{s_t0}, s{s_t0}, s{s_t1}")
        a(f"s_add_u32 s{s_t0}, s{s_t0}, 0x100000")
        a(f"v_mbcnt_lo_u32_b32 v{vT0}, -1, 0")
        a(f"v_lshlrev_b32 v{vT0}, 2, v{vT0}")
        a(f"buffer_store_dword v{vST}, v{vT0}, {sr(sWS,4)}, s{s_t0} offen")
    a("L_end:")
    a("s_endpgm")

def second_kernel(a, o):
    a("s_cmp_ge_u32 s2, 40")
    a("s_cbranch_scc1 L_end2")
    a("s_load_dwordx2 s[24:25], s[0:1], 80")
    a("s_load_dwordx2 s[28:29], s[0:1], 96")
    a(f"v_lshrrev_b32 v{vT0}, 6, v0")
    a("s_nop 0")
    a(f"v_readfirstlane_b32 s{s_w}, v{vT0}")
    a("s_waitcnt lgkmcnt(0)")
    make_srd(a, sOUT, 24, 2560)
    make_srd(a, sWS, 28, W_SIZE)
    class O: stamps = False
    consumer(a, O, False, "L_end2")
    a("L_end2:")
    a("s_endpgm")

def kd(name, vgpr):
    return f""".p2align 6
.amdhsa_kernel {name}
  .amdhsa_next_free_vgpr {vgpr}
  .amdhsa_next_free_sgpr 96
  .amdhsa_accum_offset {vgpr}
  .amdhsa_group_segment_fixed_size 0
  .amdhsa_kernarg_size 104
  .amdhsa_user_sgpr_count 2
  .amdhsa_user_sgpr_kernarg_segment_ptr 1
  .amdhsa_system_sgpr_workgroup_id_x 1
.end_amdhsa_kernel
"""

def generate(o):
    out = HEADER
    k1 = NAME + "_kernel"
    k2 = "final_reduce_kernel"
    if o.mode == "single":
        out += f"; @launch grid=(256,1,1) block=(1024,1,1) lds={L_TOTAL}\n"
    else:
        out += f"; @launch kernel={k1} grid=(256,1,1) block=(1024,1,1) lds={L_TOTAL}\n"
        out += f"; @launch kernel={k2} grid=(40,1,1) block=(1024,1,1) lds={L_TOTAL}\n"
    out += '.amdgcn_target "amdgcn-amd-amdhsa--gfx950"\n.text\n'
    out += f".globl {k1}\n.p2align 8\n.type {k1},@function\n{k1}:\n"
    a = Asm()
    main_kernel(a, o)
    out += a.text()
    if o.mode != "single":
        out += f".globl {k2}\n.p2align 8\n.type {k2},@function\n{k2}:\n"
        b = Asm()
        second_kernel(b, o)
        out += b.text()
    out += '.section .rodata,"a"\n' + kd(k1, 128)
    if o.mode != "single":
        out += kd(k2, 64)
    return out

if __name__ == "__main__":
    p = argparse.ArgumentParser()
    p.add_argument("-o", default="-")
    p.add_argument("--mode", default="single")
    p.add_argument("--nt", type=int, default=1)
    p.add_argument("--stamps", type=int, default=0)
    p.add_argument("--win", type=int, default=5)
    p.add_argument("--win0", type=int, default=3)
    p.add_argument("--order", default="HAAAAAAAAAASSSSG")
    p.add_argument("--kafter", type=int, default=1)
    p.add_argument("--ackwait", type=int, default=1)
    p.add_argument("--prot", type=int, default=1)
    p.add_argument("--wo0", type=int, default=1)
    p.add_argument("--qfl", default="")
    p.add_argument("--wo", type=int, default=1)
    p.add_argument("--prio", type=int, default=3)
    p.add_argument("--budget", type=int, default=3)
    p.add_argument("--hmap", type=int, default=0)
    p.add_argument("--b3g", type=int, default=1)
    o = p.parse_args()
    s = generate(o)
    if o.o == "-":
        sys.stdout.write(s)
    else:
        open(o.o, "w").write(s)
```
